```python
import torch

def _softmax(x, axis=-1):
    return torch.softmax(x, dim=axis)
def _gelu(x):
    return torch.nn.functional.gelu(x, approximate="tanh")
def _silu(x):
    return torch.nn.functional.silu(x)
def _sigmoid(x):
    return torch.sigmoid(x)
def _layernorm(x, axis=-1, eps=1e-5):
    m = x.mean(dim=axis, keepdim=True)
    v = x.var(dim=axis, keepdim=True, unbiased=False)
    return (x - m) / torch.sqrt(v + eps)
def _scatter_add(tgt, idx, src, axis=0):
    return tgt.clone().index_add_(axis, idx, src)
def _segment_sum(src, seg, n):
    out = torch.zeros((n,) + src.shape[1:], dtype=src.dtype)
    return out.index_add_(0, seg, src)
def _pad(x, pw):
    flat = tuple(v for pair in reversed(pw) for v in pair)
    return torch.nn.functional.pad(x, flat)

kernel_name = 'standalone__cheap_equivariant_egnn__graph'

def setup_inputs():

    _w = (lambda a: (lambda t: t.to(torch.bfloat16) if t.is_floating_point() else t)(torch.as_tensor(a)))
    N, deg, D, De = 10000, 64, 64, max(4, 1)
    E = N * deg
    return {
        "h": _w((lambda *s: torch.randn(*s, dtype=torch.bfloat16) * 0.2)(N, D)),
        "pos": _w((lambda *s: torch.randn(*s, dtype=torch.bfloat16) * 0.8)(N, 3)),
        "e_attr": _w((lambda *s: torch.randn(*s, dtype=torch.bfloat16) * 0.8)(E, De)),
        "src": _w((lambda lo, hi, *s: torch.randint(lo, hi, s))(0, N, E).to(torch.int64)),
        "dst": _w((lambda lo, hi, *s: torch.randint(lo, hi, s))(0, N, E).to(torch.int64)),
        "w_e": _w(0.1 * (lambda *s: torch.randn(*s, dtype=torch.bfloat16) * 0.8)(2 * D + 1 + De, D)),
        "w_x": _w(0.1 * (lambda *s: torch.randn(*s, dtype=torch.bfloat16) * 0.2)(D, 1)),
        "w_h": _w(0.1 * (lambda *s: torch.randn(*s, dtype=torch.bfloat16) * 0.2)(2 * D, D)),
    }

def reference(h, pos, e_attr, src, dst, w_e, w_x, w_h):
    N, D = h.shape[0], h.shape[1]
    diff = pos[dst] - pos[src]
    dist2 = torch.sum(diff * diff, axis=-1, keepdims=True)
    e_in = torch.concatenate([h[dst], h[src], dist2, e_attr], axis=-1)
    m_ij = _silu(e_in @ w_e)
    coord_scale = m_ij @ w_x
    pos_new = pos + _segment_sum(diff * coord_scale, dst, N)
    m_i = _segment_sum(m_ij, dst, N)
    h_new = h + _silu(torch.concatenate([h, m_i], axis=-1) @ w_h)
    return h_new, pos_new
```

```python
import sys, struct

NAME = "standalone__cheap_equivariant_egnn__graph"
LOG2E = 1.4426950408889634
LN2 = 0.6931471805599453


def f32bits(x):
    return struct.unpack("<I", struct.pack("<f", x))[0]


REC_OFF = 0
REC_BYTES = 250 * 10240
TAB_OFF = 2560000
TAB_BYTES = 250 * 250 * 16
WTAB_OFF = 3560448
WTAB_BYTES = 4 * 8192 + 1024
WT2, WT1, WHA, WHB, BKC = 0, 8192, 16384, 24576, 32768

CAPG = 90
CAP = CAPG * 32
ENTG = 0
ENTA = CAP * 8
STAGE = 2 * CAP * 8
DT = STAGE
AT = STAGE + 32768
ACCM = AT + 5120
ACCM_ROW = 272
ACCP = ACCM + 40 * ACCM_ROW
OH = ACCP + 7680
PD = OH + 128
WT = PD + 640
POS = 103424
LDS2 = POS + 59 * 1024
SCR = POS
assert WT + 128 <= POS and LDS2 <= 163840


class Asm:
    def __init__(self):
        self.l = []

    def __call__(self, s):
        for x in s.strip("\n").split("\n"):
            self.l.append("    " + x.strip())

    def label(self, s):
        self.l.append(s + ":")

    def c(self, s):
        self.l.append("    ; " + s)


def vr(b, n=1):
    return f"v{b}" if n == 1 else f"v[{b}:{b + n - 1}]"


def sr(b, n=1):
    return f"s{b}" if n == 1 else f"s[{b}:{b + n - 1}]"


def srd(a, d, lo, hi, nbytes, add=0, stride=0):
    if add:
        a(f"s_add_u32 s{d}, s{lo}, {add}")
        a(f"s_addc_u32 s{d+1}, s{hi}, 0")
        a(f"s_and_b32 s{d+1}, s{d+1}, 0xffff")
    else:
        a(f"s_mov_b32 s{d}, s{lo}")
        a(f"s_and_b32 s{d+1}, s{hi}, 0xffff")
    if stride:
        a(f"s_or_b32 s{d+1}, s{d+1}, {stride << 16}")
    a(f"s_mov_b32 s{d+2}, {nbytes}")
    a(f"s_mov_b32 s{d+3}, 0x20000")


def wave_scan(a, regs):
    steps = ["row_shr:1 row_mask:0xf bank_mask:0xf bound_ctrl:0", "row_shr:2 row_mask:0xf bank_mask:0xf bound_ctrl:0",
             "row_shr:4 row_mask:0xf bank_mask:0xf bound_ctrl:0", "row_shr:8 row_mask:0xf bank_mask:0xf bound_ctrl:0",
             "row_bcast:15 row_mask:0xa bank_mask:0xf", "row_bcast:31 row_mask:0xc bank_mask:0xf"]
    a("s_nop 1")
    for st in steps:
        for r in regs:
            a(f"v_add_u32_dpp v{r}, v{r}, v{r} {st}")
        if len(regs) < 3:
            a(f"s_nop {2 - len(regs)}")


def gen_k1(a):
    HIST = 0
    SORT = 8192
    WTOT = SORT + 10240
    a.label("egnn_bin_kernel")
    a("s_cmp_ge_u32 s2, 254")
    a("s_cbranch_scc1 L1_done")
    a("s_cmp_ge_u32 s2, 250")
    a("s_cbranch_scc1 L1_prep")
    a("s_load_dwordx4 s[4:7], s[0:1], 24")
    a("s_load_dwordx2 s[8:9], s[0:1], 80")
    a("s_mul_i32 s3, s2, 10240")
    a("v_lshlrev_b32 v1, 4, v0")
    a("v_mov_b32 v20, 0\nv_mov_b32 v21, 0\nv_mov_b32 v22, 0\nv_mov_b32 v23, 0")
    a("v_lshrrev_b32 v2, 6, v0")
    a("s_mov_b32 s30, -40")
    a("v_readfirstlane_b32 s31, v2")
    a("s_waitcnt lgkmcnt(0)")
    srd(a, 12, 6, 7, 2560000)
    srd(a, 16, 4, 5, 2560000)
    a("buffer_load_dwordx4 v[4:7], v1, s[12:15], s3 offen")
    a("buffer_load_dwordx4 v[8:11], v1, s[16:19], s3 offen")
    srd(a, 20, 8, 9, REC_BYTES, add=REC_OFF)
    srd(a, 24, 8, 9, TAB_BYTES, add=TAB_OFF)
    a("v_cmp_gt_u32 vcc, 512, v0")
    a("s_and_saveexec_b64 s[28:29], vcc")
    a(f"ds_write_b128 v1, v[20:23] offset:{HIST}")
    a("s_mov_b64 exec, s[28:29]")
    a("v_mov_b32 v3, 1")
    a("v_lshlrev_b32 v24, 16, v0")
    a("s_waitcnt lgkmcnt(0)")
    a("s_barrier")
    a("s_waitcnt vmcnt(1)")
    for u in range(4):
        d = 4 + u
        a(f"v_mul_u32_u24 v12, 52429, v{d}")
        a(f"v_lshrrev_b32 v12, 21, v12")
        a(f"v_lshrrev_b32 v13, 3, v{d}")
        a(f"v_mad_u32_u24 v13, v12, 3, v13")
        a(f"v_lshlrev_b32 v{28+u}, 2, v13")
        a(f"ds_add_rtn_u32 v{32+u}, v{28+u}, v3 offset:{HIST}")
        a(f"v_mad_i32_i24 v{d}, v12, s30, v{d}")
        a(f"v_lshl_or_b32 v{d}, v{d}, 26, v24")
        if u:
            a(f"v_or_b32 v{d}, {u << 14}, v{d}")
    a("s_waitcnt lgkmcnt(0)")
    a("s_barrier")
    a("s_cmp_ge_u32 s31, 4")
    a("s_cbranch_scc1 L1_noscan1")
    a("v_lshlrev_b32 v14, 5, v0")
    a(f"ds_read_b128 v[36:39], v14 offset:{HIST}")
    a(f"ds_read_b32 v40, v14 offset:{HIST+16}")
    a("s_waitcnt lgkmcnt(0)")
    a("v_add_u32 v37, v36, v37")
    a("v_add_u32 v38, v37, v38")
    a("v_add_u32 v39, v38, v39")
    a("v_add_u32 v40, v39, v40")
    a("v_mov_b32 v41, v40")
    wave_scan(a, [41])
    a("s_lshl_b32 s32, s31, 2")
    a("v_mov_b32 v42, s32")
    a("s_mov_b32 exec_lo, 0\ns_mov_b32 exec_hi, 0x80000000")
    a(f"ds_write_b32 v42, v41 offset:{WTOT}")
    a("s_mov_b64 exec, -1")
    a("s_waitcnt lgkmcnt(0)")
    a.label("L1_noscan1")
    a("s_barrier")
    a("s_cmp_ge_u32 s31, 4")
    a("s_cbranch_scc1 L1_noscan2")
    a(f"ds_read_b128 v[44:47], v20 offset:{WTOT}")
    a("v_sub_u32 v41, v41, v40")
    a("s_waitcnt lgkmcnt(0)")
    a("v_readfirstlane_b32 s33, v44")
    a("v_readfirstlane_b32 s34, v45")
    a("v_readfirstlane_b32 s35, v46")
    a("s_cmp_ge_u32 s31, 1")
    a("s_cselect_b32 s33, s33, 0")
    a("s_cmp_ge_u32 s31, 2")
    a("s_cselect_b32 s34, s34, 0")
    a("s_cmp_ge_u32 s31, 3")
    a("s_cselect_b32 s35, s35, 0")
    a("s_add_u32 s33, s33, s34")
    a("s_add_u32 s33, s33, s35")
    a("v_add_u32 v48, s33, v41")
    a("v_add_u32 v49, v48, v36")
    a("v_add_u32 v50, v48, v37")
    a("v_add_u32 v51, v48, v38")
    a("v_add_u32 v52, v48, v39")
    a("v_add_u32 v53, v48, v40")
    a(f"ds_write_b128 v14, v[48:51] offset:{HIST}")
    a(f"ds_write_b32 v14, v52 offset:{HIST+16}")
    a("v_lshl_or_b32 v56, v49, 16, v48")
    a("v_lshl_or_b32 v57, v51, 16, v50")
    a("v_lshl_or_b32 v58, v53, 16, v52")
    a("v_mov_b32 v59, 0")
    a("s_mul_i32 s36, s2, 4000")
    a("v_cmp_gt_u32 vcc, 250, v0")
    a("s_and_saveexec_b64 s[28:29], vcc")
    a("buffer_store_dwordx4 v[56:59], v1, s[24:27], s36 offen")
    a("s_mov_b64 exec, s[28:29]")
    a("s_waitcnt lgkmcnt(0)")
    a.label("L1_noscan2")
    a("s_barrier")
    for u in range(4):
        a(f"ds_read_b32 v{36+u}, v{28+u} offset:{HIST}")
    a("s_waitcnt vmcnt(0)")
    for u in range(4):
        a(f"v_or_b32 v{4+u}, v{4+u}, v{8+u}")
    a("s_waitcnt lgkmcnt(0)")
    for u in range(4):
        a(f"v_add_lshl_u32 v{36+u}, v{36+u}, v{32+u}, 2")
        a(f"ds_write_b32 v{36+u}, v{4+u} offset:{SORT}")
    a("s_waitcnt lgkmcnt(0)")
    a("s_barrier")
    a(f"ds_read_b128 v[40:43], v1 offset:{SORT}")
    a("s_waitcnt lgkmcnt(0)")
    a("buffer_store_dwordx4 v[40:43], v1, s[20:23], s3 offen")
    a("s_endpgm")

    a.label("L1_prep")
    a("s_load_dwordx2 s[4:5], s[0:1], 40")
    a("s_load_dwordx2 s[6:7], s[0:1], 56")
    a("s_load_dwordx2 s[8:9], s[0:1], 80")
    a("s_sub_u32 s3, s2, 250")
    a("s_waitcnt lgkmcnt(0)")
    srd(a, 12, 4, 5, 133 * 128)
    srd(a, 16, 6, 7, 128 * 128)
    srd(a, 20, 8, 9, WTAB_BYTES, add=WTAB_OFF)
    a("s_cmp_ge_u32 s3, 2")
    a("s_cselect_b32 s24, s16, s12")
    a("s_cselect_b32 s25, s17, s13")
    a("s_cselect_b32 s26, s18, s14")
    a("s_mov_b32 s27, 0x20000")
    a("s_mov_b32 s28, 0")
    a("s_cmp_eq_u32 s3, 0")
    a("s_cselect_b32 s28, 8192, s28")
    a("s_cmp_eq_u32 s3, 3")
    a("s_cselect_b32 s28, 8192, s28")
    a("v_lshrrev_b32 v2, 6, v0")
    a("s_nop 0")
    a("v_readfirstlane_b32 s31, v2")
    a("s_nop 3")
    a("s_cmp_ge_u32 s31, 8")
    a("s_cbranch_scc1 L1_prep_bk")
    a("v_bfe_u32 v1, v0, 5, 3")
    a("v_lshlrev_b32 v1, 10, v1")
    a("v_lshrrev_b32 v2, 8, v0")
    a("v_lshl_add_u32 v1, v2, 6, v1")
    a("v_and_b32 v2, 31, v0")
    a("v_lshl_add_u32 v1, v2, 1, v1")
    for j in range(8):
        a(f"buffer_load_ushort v{8+j}, v1, s[24:27], s28 offen offset:{128*j}")
    a("v_lshlrev_b32 v3, 4, v0")
    a("s_lshl_b32 s29, s3, 13")
    a("s_waitcnt vmcnt(0)")
    a("s_cmp_eq_u32 s3, 0")
    a("s_cbranch_scc1 L1_prep_scale")
    for q in range(4):
        a(f"v_lshl_or_b32 v{16+q}, v{9+2*q}, 16, v{8+2*q}")
    a("buffer_store_dwordx4 v[16:19], v3, s[20:23], s29 offen")
    a("s_endpgm")
    a.label("L1_prep_scale")
    for j in range(8):
        a(f"v_lshlrev_b32 v{8+j}, 16, v{8+j}")
        a(f"v_mul_f32 v{8+j}, {f32bits(-LOG2E):#x}, v{8+j}")
    for q in range(4):
        a(f"v_cvt_pk_bf16_f32 v{16+q}, v{8+2*q}, v{9+2*q}")
    a("buffer_store_dwordx4 v[16:19], v3, s[20:23], s29 offen")
    a("s_endpgm")
    a.label("L1_prep_bk")
    a("s_cmp_lg_u32 s3, 0")
    a("s_cbranch_scc1 L1_done")
    a("s_cmp_lg_u32 s31, 8")
    a("s_cbranch_scc1 L1_done")
    a("v_and_b32 v2, 63, v0")
    a("v_lshlrev_b32 v1, 1, v2")
    a("s_mov_b32 s28, 16384")
    for j in range(5):
        a(f"buffer_load_ushort v{8+j}, v1, s[12:15], s28 offen offset:{128*j}")
    a("v_lshlrev_b32 v3, 4, v2")
    a(f"s_mov_b32 s29, {BKC}")
    a("s_waitcnt vmcnt(0)")
    for j in range(1, 5):
        a(f"v_lshlrev_b32 v{8+j}, 16, v{8+j}")
        a(f"v_mul_f32 v{8+j}, {f32bits(-LOG2E):#x}, v{8+j}")
    a("v_cvt_pk_bf16_f32 v16, v9, v10")
    a("v_cvt_pk_bf16_f32 v17, v11, v12")
    a("v_xor_b32 v18, 0x8000, v8")
    a("v_mov_b32 v19, 0")
    a("buffer_store_dwordx4 v[16:19], v3, s[20:23], s29 offen")
    a.label("L1_done")
    a("s_endpgm")
    return dict(vgpr=64, sgpr=40, lds=WTOT + 64)


def gen_k2(a):
    W = 16
    BK = W + 32
    T = BK + 8
    D = T + 32
    A = D + 32
    AK = A + 16
    S = AK + 8
    P = S + 8
    E = P + 16
    IDX = E + 16
    RA = IDX + 8
    TRA = RA + 4
    VSRC = TRA + 1
    VENT = VSRC + 1
    VD8 = VENT + 1
    VADR = VD8 + 1
    VMUL = VADR + 2
    VCST = VMUL + 1
    VZ = VCST + 1
    VZ += VZ & 1
    VEOFF = VZ + 2
    VONE = VEOFF + 1
    WX = VONE + 1
    VFL = WX + 2
    VFP = VFL + 1
    VAT = VFP + 1
    VTMP = VAT + 1
    TB = VTMP + 1
    TB += TB & 1
    TB += TB & 2
    VC = TB + 4
    VCB = VC + 1
    VDT = VCB + 1
    NV = VDT + 1
    LANE = 1
    assert NV <= 256
    X = T

    sH, sEA, sREC, sTAB, sWT, sM = 4, 8, 12, 16, 20, 24
    sB, sWAVE = 28, 29
    sLO, sSPAN = 30, 31
    sGB = 32
    sEND = 38
    sG, sG1, sJ0, sJ1, sJT, sNB, sBE = 44, 45, 46, 47, 48, 49, 50
    sSTG = 51
    sT0 = 52
    sMASK = 64
    sPTR = 76
    sEXLO, sEXHI = 90, 92
    NS = 96

    a.label("egnn_main_kernel")
    a("s_cmp_ge_u32 s2, 256")
    a("s_cbranch_scc1 L2_done")
    a("s_and_b32 s3, s2, 7")
    a("s_lshl_b32 s3, s3, 5")
    a(f"s_lshr_b32 s{sB}, s2, 3")
    a(f"s_add_u32 s{sB}, s{sB}, s3")
    a(f"s_cmp_ge_u32 s{sB}, 250")
    a("s_cbranch_scc1 L2_done")
    a(f"s_load_dwordx2 s[88:89], s[0:1], 80")
    a(f"s_load_dwordx4 s[76:79], s[0:1], 0")
    a(f"s_load_dwordx2 s[80:81], s[0:1], 16")
    a(f"s_load_dwordx2 s[84:85], s[0:1], 48")
    a(f"s_load_dwordx2 s[86:87], s[0:1], 64")
    a(f"v_and_b32 v{LANE}, 63, v0")
    a("v_lshrrev_b32 v2, 6, v0")
    a(f"v_lshrrev_b32 v{VC}, 1, v0")
    a(f"v_readfirstlane_b32 s{sWAVE}, v2")
    a(f"v_mul_u32_u24 v2, 4000, v{VC}")
    a(f"s_lshl_b32 s{sT0}, s{sB}, 4")
    a(f"v_lshlrev_b32 v3, 4, v{LANE}")
    a(f"v_and_b32 v4, 31, v0")
    a(f"v_bfe_u32 v5, v0, 5, 1")
    a(f"s_mov_b32 s{sEXLO}, -1\ns_mov_b32 s{sEXLO+1}, 0\ns_mov_b32 s{sEXHI}, 0\ns_mov_b32 s{sEXHI+1}, -1")
    a("s_waitcnt lgkmcnt(0)")
    srd(a, sTAB, 88, 89, TAB_BYTES, add=TAB_OFF)
    a(f"buffer_load_dwordx4 {vr(TB,4)}, v2, {sr(sTAB,4)}, s{sT0} offen")
    srd(a, sWT, 88, 89, WTAB_BYTES, add=WTAB_OFF)
    srd(a, sREC, 88, 89, REC_BYTES, add=REC_OFF)
    srd(a, sH, 76, 77, 10000, stride=128)
    srd(a, sEA, 80, 81, 5120000)

    HA = X
    W1 = X + 16
    PDv = X + 32

    def uniform_loads(nextra):
        for i in range(8):
            if i * 1024 < 4096:
                a(f"buffer_load_dwordx4 {vr(W+4*i,4)}, v3, {sr(sWT,4)}, 0 offen offset:{WT2 + i*1024}")
            else:
                a(f"s_mov_b32 s{sT0+1}, {WT2 + i*1024}")
                a(f"buffer_load_dwordx4 {vr(W+4*i,4)}, v3, {sr(sWT,4)}, s{sT0+1} offen")
        a(f"v_lshlrev_b32 v6, 4, v4")
        a(f"s_mov_b32 s{sT0+1}, {BKC}")
        a(f"buffer_load_dwordx4 {vr(BK,4)}, v6, {sr(sWT,4)}, s{sT0+1} offen")
        a(f"buffer_load_dwordx4 {vr(BK+4,4)}, v6, {sr(sWT,4)}, s{sT0+1} offen offset:512")
        srd(a, sM, 84, 85, 128)
        a(f"v_lshlrev_b32 v6, 1, v4")
        a(f"buffer_load_ushort v{WX}, v6, {sr(sM,4)}, 0 offen")
        a(f"buffer_load_ushort v{WX+1}, v6, {sr(sM,4)}, 0 offen offset:64")
        pos_dma()
        a(f"s_waitcnt vmcnt({nextra + 20})")

    def pos_dma():
        srd(a, sM, 78, 79, 60000)
        a(f"s_lshl_b32 s{sT0+1}, s{sWAVE}, 10")
        for i in range(8):
            a(f"s_add_u32 m0, s{sT0+1}, {POS}")
            a(f"s_nop 0")
            a(f"buffer_load_dwordx4 v3, {sr(sM,4)}, s{sT0+1} offen lds")
            if i < 7:
                a(f"s_add_u32 s{sT0+1}, s{sT0+1}, 8192")
            if i == 6:
                a(f"s_min_u32 s{sT0+1}, s{sT0+1}, {58*1024}")

    a(f"s_mul_i32 s{sT0+2}, s{sB}, 40")
    a(f"s_cmp_ge_u32 s{sWAVE}, 4")
    a("s_cbranch_scc1 L2_ld_b")
    a(f"s_lshr_b32 s{sT0+3}, s{sWAVE}, 1")
    a(f"s_lshl_b32 s{sT0+3}, s{sT0+3}, 5")
    a(f"s_add_u32 s{sT0+3}, s{sT0+3}, s{sT0+2}")
    a(f"v_add_u32 v6, s{sT0+3}, v4")
    a(f"v_lshlrev_b32 v7, 4, v5")
    for s in range(4):
        a(f"buffer_load_dwordx4 {vr(HA+4*s,4)}, v[6:7], {sr(sH,4)}, 0 idxen offen offset:{32*s}")
    a(f"s_and_b32 s{sT0+3}, s{sWAVE}, 1")
    a(f"s_lshl_b32 s{sT0+3}, s{sT0+3}, 12")
    a(f"s_add_u32 s{sT0+3}, s{sT0+3}, {WT1}")
    for s in range(4):
        a(f"buffer_load_dwordx4 {vr(W1+4*s,4)}, v3, {sr(sWT,4)}, s{sT0+3} offen offset:{1024*s}")
    uniform_loads(8)
    a("s_branch L2_ld_done")
    a.label("L2_ld_b")
    srd(a, sM, 78, 79, 60000)
    a(f"v_add_u32 v6, s{sT0+2}, v{LANE}")
    a(f"v_mul_u32_u24 v6, 6, v6")
    for i in range(3):
        a(f"buffer_load_ushort v{PDv+i}, v6, {sr(sM,4)}, 0 offen offset:{2*i}")
    uniform_loads(3)
    a.label("L2_ld_done")
    a(f"s_mov_b32 s{sLO}, 0")
    a(f"s_mov_b32 s{sSPAN}, 256")
    a(f"s_mov_b32 s{sT0+11}, 1")

    R = X + 36
    VREM = X + 52
    VRA = X + 53
    C0, C1, C2 = X + 54, X + 55, X + 56
    I0, I1, I2 = X + 57, X + 58, X + 59
    VI0 = X + 60
    Y = X + 64
    Q = X + 72
    Z4 = X + 88

    a.label("L2_round")
    a(f"v_and_b32 v{VI0}, 0xffff, v{TB}")
    a(f"v_and_b32 v6, 1, v0")
    a(f"v_lshl_add_u32 v{VI0}, v6, 2, v{VI0}")
    a(f"v_lshrrev_b32 v7, 16, v{TB+2}")
    a(f"v_sub_u32 v{VREM}, v7, v{VI0}")
    a(f"v_subrev_u32 v8, s{sLO}, v{VC}")
    a(f"v_cmp_gt_u32 {sr(sMASK,2)}, s{sSPAN}, v8")
    a(f"v_mul_u32_u24 v{VRA}, 10240, v{VC}")
    a(f"v_lshl_add_u32 v{VRA}, v{VI0}, 2, v{VRA}")
    a(f"v_cndmask_b32 v{VREM}, 0, v{VREM}, {sr(sMASK,2)}")

    def rec_loads():
        for k in range(4):
            a(f"v_cmpx_lt_i32 vcc, {8*k}, v{VREM}")
            a(f"buffer_load_dwordx4 {vr(R+4*k,4)}, v{VRA}, {sr(sREC,4)}, 0 offen offset:{32*k}")
        a("s_mov_b64 exec, -1")
    rec_loads()
    a(f"v_alignbit_b32 v8, v{TB+1}, v{TB}, 16")
    a(f"v_alignbit_b32 v9, v{TB+2}, v{TB+1}, 16")
    a(f"v_sub_u32 v{C0}, v8, v{TB}")
    a(f"v_sub_u32 v{C1}, v9, v{TB+1}")
    a(f"v_and_b32 v8, 0xffff, v{TB+2}")
    a(f"v_sub_u32 v8, v7, v8")
    a(f"v_and_b32 v9, 0xffff, v{TB}")
    a(f"v_sub_u32 v9, v7, v9")
    a(f"v_lshl_or_b32 v{C2}, v9, 12, v8")
    for c in (C0, C1, C2):
        a(f"v_cndmask_b32 v{c}, 0, v{c}, {sr(sMASK,2)}")
    a(f"v_cmp_eq_u32 {sr(sMASK+2,2)}, 0, v6")
    a("s_nop 1")
    for c, i in ((C0, I0), (C1, I1), (C2, I2)):
        a(f"v_cndmask_b32 v{i}, 0, v{c}, {sr(sMASK+2,2)}")
    wave_scan(a, [I0, I1, I2])
    a(f"s_lshl_b32 s{sT0}, s{sWAVE}, 4")
    a(f"s_add_u32 s{sT0}, s{sT0}, {WT}")
    a(f"v_mov_b32 v8, s{sT0}")
    a("s_mov_b32 exec_lo, 0\ns_mov_b32 exec_hi, 0x80000000")
    a(f"ds_write_b32 v8, v{I0}")
    a(f"ds_write_b32 v8, v{I1} offset:4")
    a(f"ds_write_b32 v8, v{I2} offset:8")
    a("s_mov_b64 exec, -1")
    a(f"s_cmp_eq_u32 s{sT0+11}, 0")
    a("s_cbranch_scc1 L2_noinit")
    for i in range(4):
        a(f"v_mov_b32 v{Z4+i}, 0")
    a(f"v_lshlrev_b32 v8, 4, v0")
    a(f"v_add_u32 v8, {ACCM}, v8")
    a(f"ds_write_b128 v8, {vr(Z4,4)}")
    a(f"ds_write_b128 v8, {vr(Z4,4)} offset:8192")
    nrest = (OH + 128 - ACCM - 16384) // 16
    a(f"v_cmp_gt_u32 vcc, {nrest}, v0")
    a(f"s_and_saveexec_b64 {sr(sT0+2,2)}, vcc")
    a(f"ds_write_b128 v8, {vr(Z4,4)} offset:16384")
    a(f"s_mov_b64 exec, {sr(sT0+2,2)}")
    a(f"v_mul_u32_u24 v{VCB}, 20480, v{VC}")
    a(f"v_lshlrev_b32 v{VDT}, 2, v0")
    a(f"v_add_u32 v{VDT}, {DT}, v{VDT}")
    a.label("L2_noinit")
    a("s_waitcnt lgkmcnt(0)")
    a("s_barrier")
    a(f"v_and_b32 v8, 7, v0")
    a(f"v_lshlrev_b32 v8, 4, v8")
    a(f"v_add_u32 v8, {WT}, v8")
    a(f"ds_read_b128 {vr(Q,4)}, v8")
    a(f"s_cmp_lg_u32 s{sWAVE}, 5")
    a("s_cbranch_scc1 L2_nooh")
    a(f"v_mul_u32_u24 v9, 18, v{LANE}")
    a(f"v_add_u32 v9, {OH}, v9")
    a(f"v_mov_b32 v10, 0x3f80")
    a("s_mov_b64 exec, 0xff")
    a("ds_write_b16 v9, v10")
    a("s_mov_b64 exec, -1")
    a.label("L2_nooh")
    for c, i in ((C0, I0), (C1, I1), (C2, I2)):
        a(f"v_sub_u32 v{i}, v{i}, v{c}")
    a("s_waitcnt lgkmcnt(0)")
    for i in range(3):
        a(f"v_mov_b32 v{Q+4+i}, v{Q+i}")
    a("s_nop 1")
    for sh in (1, 2, 4):
        for i in range(3):
            a(f"v_add_u32_dpp v{Q+4+i}, v{Q+4+i}, v{Q+4+i} row_shr:{sh} row_mask:0xf bank_mask:0xf bound_ctrl:0")
    for i in range(3):
        a(f"v_sub_u32 v{Q+i}, v{Q+4+i}, v{Q+i}")
    a("s_nop 0")
    for i in range(3):
        a(f"v_readlane_b32 s{sT0+i}, v{Q+4+i}, 7")
    for i in range(3):
        a(f"v_readlane_b32 s{sT0+3+i}, v{Q+i}, s{sWAVE}")
    a(f"s_lshr_b32 s{sT0+6}, s{sT0+2}, 12")
    a(f"s_cmp_gt_u32 s{sT0+6}, {CAP}")
    a("s_cbranch_scc1 L2_overflow")
    a(f"s_and_b32 s{sEND}, s{sT0}, 0xffff")
    a(f"s_lshr_b32 s{sEND+1}, s{sT0}, 16")
    a(f"s_and_b32 s{sEND+2}, s{sT0+1}, 0xffff")
    a(f"s_lshr_b32 s{sEND+3}, s{sT0+1}, 16")
    a(f"s_and_b32 s{sEND+4}, s{sT0+2}, 0xfff")
    a(f"s_mov_b32 s{sEND+5}, 0")
    a(f"s_mov_b32 s{sGB}, 0")
    for j in range(5):
        a(f"s_add_u32 s{sT0+6}, s{sEND+j}, 31")
        a(f"s_lshr_b32 s{sT0+6}, s{sT0+6}, 5")
        a(f"s_add_u32 s{sGB+j+1}, s{sGB+j}, s{sT0+6}")
        if j:
            a(f"s_lshl_b32 s{sT0+6}, s{sGB+j}, 5")
            a(f"s_add_u32 s{sEND+j}, s{sEND+j}, s{sT0+6}")
    a(f"s_cmp_gt_u32 s{sGB+5}, {CAPG}")
    a("s_cbranch_scc1 L2_overflow")
    a(f"s_lshl_b32 s{sT0+6}, s{sGB+1}, 21")
    a(f"s_add_u32 s{sT0+3}, s{sT0+3}, s{sT0+6}")
    a(f"s_lshl_b32 s{sT0+6}, s{sGB+3}, 21")
    a(f"s_add_u32 s{sT0+4}, s{sT0+4}, s{sT0+6}")
    a(f"s_lshl_b32 s{sT0+6}, s{sGB+2}, 5")
    a(f"s_add_u32 s{sT0+4}, s{sT0+4}, s{sT0+6}")
    a(f"s_and_b32 s{sT0+5}, s{sT0+5}, 0xfff")
    a(f"s_lshl_b32 s{sT0+6}, s{sGB+4}, 5")
    a(f"s_add_u32 s{sT0+5}, s{sT0+5}, s{sT0+6}")
    a(f"v_lshl_or_b32 v8, v{VI0}, 16, v{VI0}")
    a(f"v_add3_u32 v9, v{I0}, s{sT0+3}, v8")
    a(f"v_sub_u32 v9, v9, v{TB}")
    a(f"v_add3_u32 v10, v{I1}, s{sT0+4}, v8")
    a(f"v_sub_u32 v10, v10, v{TB+1}")
    a(f"v_and_b32 v11, 0xfff, v{I2}")
    a(f"v_add3_u32 v11, v11, s{sT0+5}, v{VI0}")
    a(f"v_and_b32 v12, 0xffff, v{TB+2}")
    a(f"v_sub_u32 v11, v11, v12")
    a(f"v_and_b32 v{Y}, 0xffff, v9")
    a(f"v_lshrrev_b32 v{Y+1}, 16, v9")
    a(f"v_and_b32 v{Y+2}, 0xffff, v10")
    a(f"v_lshrrev_b32 v{Y+3}, 16, v10")
    a(f"v_lshlrev_b32 v{Y+4}, 3, v11")
    for j in range(4):
        a(f"v_lshlrev_b32 v{Y+j}, 3, v{Y+j}")

    def dt_write():
        for j in range(5):
            a(f"ds_write_b32 v{VDT}, v{Y+j} offset:{2048*j}")
    dt_write()
    a(f"s_cmp_ge_u32 s{sWAVE}, 5")
    a("s_cbranch_scc1 L2_nopad")
    a(f"s_mov_b32 m0, s{sWAVE}")
    a("s_nop 0")
    a(f"s_movrels_b32 s{sT0+6}, s{sEND}")
    a(f"s_movrels_b32 s{sT0+7}, s{sGB+1}")
    a(f"s_lshl_b32 s{sT0+7}, s{sT0+7}, 5")
    a(f"v_add_u32 v8, s{sT0+6}, v{LANE}")
    a(f"v_mov_b32 v10, 0x7ff00000")
    a(f"v_mov_b32 v11, 10000")
    a(f"v_lshlrev_b32 v9, 3, v8")
    a(f"v_cmpx_gt_u32 vcc, s{sT0+7}, v8")
    a(f"ds_write_b64 v9, v[10:11] offset:{ENTG}")
    a("s_mov_b64 exec, -1")
    a.label("L2_nopad")
    a(f"s_cmp_eq_u32 s{sT0+11}, 0")
    a("s_cbranch_scc1 L2_noap")
    a(f"s_cmp_gt_u32 s{sWAVE}, 4")
    a("s_cbranch_scc1 L2_noap")
    a("s_waitcnt vmcnt(4)")
    a(f"s_cmp_eq_u32 s{sWAVE}, 4")
    a("s_cbranch_scc1 L2_pd")
    AD = X + 96
    for s in range(4):
        cop = "0" if s == 0 else vr(AD, 16)
        a(f"v_mfma_f32_32x32x16_bf16 {vr(AD,16)}, {vr(HA+4*s,4)}, {vr(W1+4*s,4)}, {cop}")
    a(f"s_lshr_b32 s{sT0+6}, s{sWAVE}, 1")
    a(f"s_lshl_b32 s{sT0+6}, s{sT0+6}, 12")
    a(f"s_and_b32 s{sT0+7}, s{sWAVE}, 1")
    a(f"s_lshl_b32 s{sT0+7}, s{sT0+7}, 9")
    a(f"s_add_u32 s{sT0+6}, s{sT0+6}, s{sT0+7}")
    a(f"s_add_u32 s{sT0+6}, s{sT0+6}, {AT}")
    a(f"v_lshlrev_b32 v8, 4, v4")
    a(f"v_lshl_add_u32 v8, v5, 3, v8")
    a(f"v_add_u32 v8, s{sT0+6}, v8")
    a("s_nop 7")
    a("s_nop 3")
    for q in range(4):
        if q == 1:
            a(f"s_cmp_ge_u32 s{sWAVE}, 2")
            a("s_cbranch_scc1 L2_noap")
        for r in range(4):
            a(f"v_mul_f32 v{AD+4*q+r}, {f32bits(-LOG2E):#x}, v{AD+4*q+r}")
        a(f"v_cvt_pk_bf16_f32 v{AD+4*q}, v{AD+4*q}, v{AD+4*q+1}")
        a(f"v_cvt_pk_bf16_f32 v{AD+4*q+1}, v{AD+4*q+2}, v{AD+4*q+3}")
        a(f"ds_write_b64 v8, {vr(AD+4*q,2)} offset:{1024*q}")
    a("s_branch L2_noap")
    a.label("L2_pd")
    for i in range(3):
        a(f"v_lshlrev_b32 v{PDv+i}, 16, v{PDv+i}")
    a(f"v_add_u32 v8, {PD}, v3")
    a(f"v_cmpx_gt_u32 vcc, 40, v{LANE}")
    a(f"ds_write_b64 v8, {vr(PDv,2)}")
    a(f"ds_write_b32 v8, v{PDv+2} offset:8")
    a("s_mov_b64 exec, -1")
    a.label("L2_noap")

    a.label("L2_place")
    a("s_waitcnt vmcnt(0)")
    for half in range(2):
        if half:
            a(f"v_cmp_lt_i32 vcc, 16, v{VREM}")
            a("s_cbranch_vccz L2_placed")
        for i in range(8):
            r = R + 8 * half + i
            a(f"v_lshrrev_b32 v{Q+i}, 29, v{r}")
            a(f"v_lshl_add_u32 v{Q+i}, v{Q+i}, 11, v{VDT}")
            a(f"ds_read_b32 v{Q+i}, v{Q+i}")
        for i in range(8):
            r = R + 8 * half + i
            k, u = (8 * half + i) // 4, i % 4
            n = 8 * k + u
            a(f"v_cmpx_lt_i32 vcc, {n}, v{VREM}")
            a(f"s_waitcnt lgkmcnt(7)")
            a(f"ds_write2_b32 v{Q+i}, v{VCB}, v{r} offset0:{2*n} offset1:{2*n+1}")
        a("s_mov_b64 exec, -1")
    a(f"v_cmp_lt_i32 vcc, 32, v{VREM}")
    a("s_cbranch_vccz L2_placed")
    a(f"v_subrev_u32 v{VREM}, 32, v{VREM}")
    a(f"v_add_u32 v{VRA}, 128, v{VRA}")
    rec_loads()
    for j in range(5):
        a(f"v_add_u32 v{Y+j}, 256, v{Y+j}")
    dt_write()
    a("s_branch L2_place")
    a.label("L2_placed")
    a("s_waitcnt lgkmcnt(0)")
    a("s_barrier")

    a(f"s_mul_i32 s{sG}, s{sGB+5}, s{sWAVE}")
    a(f"s_add_u32 s{sG1}, s{sG}, s{sGB+5}")
    a(f"s_lshr_b32 s{sG}, s{sG}, 3")
    a(f"s_lshr_b32 s{sG1}, s{sG1}, 3")
    a(f"s_lshl_b32 s{sSTG}, s{sWAVE}, 12")
    a(f"s_add_u32 s{sSTG}, s{sSTG}, {STAGE}")
    a(f"s_sub_u32 s{sT0}, s{sG1}, s{sG}")
    a(f"s_lshl_b32 s{sT0}, s{sT0}, 5")
    a(f"s_lshl_b32 s{sT0+1}, s{sG}, 8")
    NIT = 6
    CV = X
    a(f"v_lshlrev_b32 v8, 3, v{LANE}")
    a(f"v_add_u32 v8, s{sT0+1}, v8")
    for it in range(NIT):
        a(f"ds_read_b64 {vr(CV+16*it,2)}, v8 offset:{ENTG + 512*it}")
    a(f"v_lshlrev_b32 v{VENT}, 3, v4")
    a(f"v_add_u32 v{VENT}, s{sT0+1}, v{VENT}")
    a(f"v_lshrrev_b32 v9, 3, v{LANE}")
    a(f"v_lshlrev_b32 v{VSRC}, 3, v9")
    a(f"v_add_u32 v{VSRC}, s{sT0+1}, v{VSRC}")
    a(f"v_lshrrev_b32 v9, 1, v9")
    a(f"v_and_b32 v10, 7, v0")
    a(f"v_xor_b32 v10, v10, v9")
    a(f"v_lshlrev_b32 v{IDX+1}, 4, v10")
    a(f"v_xor_b32 v{IDX+3}, 64, v{IDX+1}")
    a(f"v_mov_b32 v{IDX+5}, v{IDX+1}")
    a(f"v_mov_b32 v{IDX+7}, v{IDX+3}")
    for it in range(NIT):
        a(f"v_add_u32 v9, {64*it}, v{LANE}")
        a(f"v_cmp_gt_u32 {sr(sMASK+2*it,2)}, s{sT0}, v9")
    a(f"s_mov_b32 s{sT0+2}, {POS}")
    a(f"s_mov_b32 s{sT0+3}, {PD}")

    def conv_decode(it):
        b = CV + 16 * it
        cb, rec = b, b + 1
        a(f"s_waitcnt lgkmcnt({min(15, (NIT-1-it) + 3*it + (7 if it else 0))})" if False else "s_waitcnt lgkmcnt(0)" if it == 0 else "")
        a(f"v_and_b32 v{b+9}, 0x3fff, v{rec}")
        a(f"v_mad_u32_u24 v{b+11}, v{b+9}, 6, s{sT0+2}")
        a(f"v_and_b32 v{b+11}, -4, v{b+11}")
        a(f"ds_read2_b32 {vr(b+2,2)}, v{b+11} offset0:0 offset1:1")
        a(f"v_lshrrev_b32 v{b+12}, 26, v{rec}")
        a(f"v_lshl_add_u32 v{b+11}, v{b+12}, 4, s{sT0+3}")
        a(f"ds_read_b128 {vr(b+4,4)}, v{b+11}")
        a(f"v_lshlrev_b32 v{b+10}, 4, v{rec}")
        a(f"v_and_b32 v{b+12}, 7, v{b+12}")
        a(f"v_lshl_or_b32 v{b+9}, v{b+12}, 19, v{b+9}")
        a(f"v_bfe_u32 v{b+8}, v{rec}, 14, 12")
        a(f"v_lshl_add_u32 v{b+8}, v{b+8}, 3, v{cb}")
        a(f"s_mov_b64 exec, {sr(sMASK+2*it,2)}")
        a(f"ds_write_b64 v8, {vr(b+8,2)} offset:{ENTA + 512*it}")
        a("s_mov_b64 exec, -1")

    def conv_geo(it):
        b = CV + 16 * it
        a(f"v_alignbit_b32 v{b+11}, v{b+3}, v{b+2}, v{b+10}")
        a(f"v_lshrrev_b32 v{b+12}, v{b+10}, v{b+3}")
        a(f"v_dot2_f32_bf16 v{b+4}, v{b+11}, v12, v{b+4}")
        a(f"v_dot2_f32_bf16 v{b+5}, v{b+11}, v13, v{b+5}")
        a(f"v_dot2_f32_bf16 v{b+6}, v{b+12}, v12, v{b+6}")
        a("s_nop 2")
        a(f"v_mul_f32 v{b+11}, v{b+4}, v{b+4}")
        a(f"v_fmac_f32 v{b+11}, v{b+5}, v{b+5}")
        a(f"v_fmac_f32 v{b+11}, v{b+6}, v{b+6}")
        a(f"v_cvt_pk_bf16_f32 v{b+9}, v{b+5}, v{b+6}")
        a(f"v_mul_f32 v{b+11}, {f32bits(LOG2E):#x}, v{b+11}")
        a(f"v_cvt_pk_bf16_f32 v{b+8}, v{b+11}, v{b+4}")
        a(f"s_mov_b64 exec, {sr(sMASK+2*it,2)}")
        a(f"ds_write_b64 v8, {vr(b+8,2)} offset:{ENTG + 512*it}")
        a("s_mov_b64 exec, -1")

    def src_reads(goff):
        for i in range(4):
            a(f"ds_read_u16 v{IDX+2*i}, v{VSRC} offset:{ENTA + 256*goff + 64*i + 4}")

    def h_dma():
        for i in range(4):
            a(f"s_add_u32 m0, s{sSTG}, {1024*i}")
            a("s_nop 0")
            a(f"buffer_load_dwordx4 {vr(IDX+2*i,2)}, {sr(sH,4)}, 0 idxen offen lds")

    assert AK == X + 80
    conv_decode(0)
    src_reads(0)
    a(f"ds_read_b32 v{VEOFF}, v{VENT} offset:{ENTA}")
    a(f"ds_read_b32 v{VTMP}, v{VENT} offset:{ENTA + 256}")
    a("s_waitcnt lgkmcnt(0)")
    h_dma()
    EAL = X + 112
    a(f"buffer_load_dwordx2 {vr(EAL,2)}, v{VEOFF}, {sr(sEA,4)}, 0 offen")
    a(f"buffer_load_dwordx2 {vr(EAL+2,2)}, v{VTMP}, {sr(sEA,4)}, 0 offen")
    for it in range(1, NIT):
        conv_decode(it)
    a(f"v_mov_b32 v12, 0x0000bf80")
    a(f"v_mov_b32 v13, 0xbf800000")
    a("s_waitcnt lgkmcnt(0)")
    for it in range(NIT):
        conv_geo(it)
    a("s_waitcnt lgkmcnt(0)")
    a("s_barrier")
    a(f"s_cmp_ge_u32 s{sG}, s{sG1}")
    a("s_cbranch_scc1 L2_wave_done")

    a(f"v_mov_b32 v{VZ}, 0\nv_mov_b32 v{VZ+1}, 0")
    for i in range(32):
        a(f"v_mov_b32 v{T+i}, 0")
    a(f"s_lshl_b32 s{sT0}, s{sWAVE}, 11")
    a(f"s_add_u32 s{sT0}, s{sT0}, {SCR}")
    a(f"v_add_u32 v9, s{sT0}, v3")
    a(f"ds_write_b128 v9, {vr(T,4)}")
    a(f"ds_write_b128 v9, {vr(T,4)} offset:1024")
    a(f"v_lshlrev_b32 v{TRA}, 8, v5")
    a(f"v_bfe_u32 v9, v0, 2, 2")
    a(f"v_lshl_add_u32 v{TRA}, v9, 6, v{TRA}")
    a(f"v_bfe_u32 v9, v0, 4, 1")
    a(f"v_lshl_add_u32 v{TRA}, v9, 5, v{TRA}")
    a(f"v_and_b32 v9, 3, v0")
    a(f"v_lshl_add_u32 v{TRA}, v9, 3, v{TRA}")
    a(f"v_add_u32 v{TRA}, s{sT0}, v{TRA}")
    a(f"v_sub_u32 v{VMUL}, 2, v5")
    a(f"v_lshlrev_b32 v9, 6, v4")
    a(f"v_add_u32 v9, s{sT0}, v9")
    a(f"v_mov_b32 v{VCST}, {OH}")
    a(f"v_cndmask_b32 v{VCST}, v{VCST}, v9, {sr(sEXHI,2)}")
    a(f"v_bfe_u32 v9, v0, 1, 3")
    a(f"v_xor_b32 v9, v9, v5")
    a(f"v_lshlrev_b32 v9, 4, v9")
    a(f"v_lshl_add_u32 v9, v4, 7, v9")
    for s in range(4):
        a(f"v_xor_b32 v{RA+s}, {32*s}, v9")
        a(f"v_add_u32 v{RA+s}, s{sSTG}, v{RA+s}")
    a(f"v_mov_b32 v{VONE}, 0x3f80")
    a(f"v_lshlrev_b32 v{VAT}, 4, v4")
    a(f"v_add_u32 v{VAT}, {AT}, v{VAT}")
    a(f"v_mul_u32_u24 v{VFL}, {ACCM_ROW}, v5")
    a(f"v_lshl_add_u32 v{VFL}, v4, 2, v{VFL}")
    a(f"v_add_u32 v{VFL}, {ACCM}, v{VFL}")
    a(f"v_lshlrev_b32 v{VFP}, 2, v{LANE}")
    a(f"v_add_u32 v{VFP}, {ACCP}, v{VFP}")
    a(f"s_cmp_eq_u32 s{sT0+11}, 0")
    a("s_cbranch_scc1 L2_nowx")
    a(f"v_lshlrev_b32 v{WX}, 16, v{WX}")
    a(f"v_lshlrev_b32 v{WX+1}, 16, v{WX+1}")
    a.label("L2_nowx")
    for i in range(8):
        a(f"v_mov_b32 v{S+i}, 0")
        a(f"v_mov_b32 v{P+8+i}, 0")

    uid = [0]

    def bin_of(sg_expr_reg):
        a(f"s_mov_b32 s{sJ1}, 0")
        for k in range(1, 6):
            a(f"s_cmp_ge_u32 s{sg_expr_reg}, s{sGB+k}")
            a(f"s_addc_u32 s{sJ1}, s{sJ1}, 0")
        a(f"s_mov_b32 m0, s{sJ1}")
        a(f"s_lshl_b32 s{sT0+1}, s{sJ1}, 10")
        a(f"s_movrels_b32 s{sNB}, s{sGB+1}")
        a(f"s_movrels_b32 s{sBE}, s{sEND}")
        a(f"s_cmp_eq_u32 s{sJ1}, 5")
        a(f"s_cselect_b32 s{sNB}, -1, s{sNB}")
        a(f"v_add_u32 v{VTMP}, s{sT0+1}, v{VAT}")
        a(f"s_mov_b64 exec, {sr(sEXLO,2)}")
        a(f"ds_read_b128 {vr(BK,4)}, v{VTMP}")
        a(f"ds_read_b128 {vr(BK+4,4)}, v{VTMP} offset:512")
        a("s_mov_b64 exec, -1")

    def quad_mask(sg_reg):
        a(f"s_lshl_b32 s{sT0+2}, s{sg_reg}, 5")
        a(f"s_sub_i32 s{sT0+2}, s{sBE}, s{sT0+2}")
        a(f"s_bfm_b32 s{sT0+5}, s{sT0+2}, 0")
        a(f"s_cmp_ge_i32 s{sT0+2}, 32")
        a(f"s_cselect_b32 s{sT0+5}, -1, s{sT0+5}")
        a(f"s_cmp_ge_u32 s{sg_reg}, s{sG1}")
        a(f"s_cselect_b32 s{sT0+5}, 0, s{sT0+5}")
        a(f"s_mov_b32 s{sT0+4}, 0")

    def mf_s1(t, s, par):
        cop = "0" if s == 0 else vr(D + 16 * t, 16)
        if s < 4:
            return f"v_mfma_f32_32x32x16_bf16 {vr(D+16*t,16)}, {vr(A+4*s,4)}, {vr(W+(t*4+s)*4,4)}, {cop}"
        return f"v_mfma_f32_32x32x16_bf16 {vr(D+16*t,16)}, {vr(AK+4*par,4)}, {vr(BK+4*t,4)}, {cop}"

    def mf_s2(t, ks):
        return f"v_mfma_f32_32x32x16_bf16 {vr(T+16*t,16)}, {vr(S+4*ks,4)}, {vr(P+8*t+4*ks,4)}, {vr(T+16*t,16)}"

    def flush(zero):
        a(f"s_mul_i32 s{sT0+1}, s{sJT}, {8*ACCM_ROW}")
        a(f"v_add_u32 v{VTMP}, s{sT0+1}, v{VFL}")
        for t in range(2):
            for q in range(4):
                a(f"ds_add_f32 v{VTMP}, v{T+16*t+4*q} offset:{q*2*ACCM_ROW + t*128}")
        regs = [4 * q + c for q in range(4) for c in (1, 2, 3)]
        for i, r in enumerate(regs):
            a(f"v_mul_f32 v{E+i}, v{T+r}, v{WX}")
        for i, r in enumerate(regs):
            a(f"v_fmac_f32 v{E+i}, v{T+16+r}, v{WX+1}")
        a(f"s_mul_i32 s{sT0+1}, s{sJT}, 1536")
        a(f"v_add_u32 v{VTMP}, s{sT0+1}, v{VFP}")
        for i in range(6):
            a(f"v_permlane16_swap_b32 v{E+2*i}, v{E+2*i+1}")
        a("s_nop 1")
        for i in range(6):
            a(f"v_add_f32 v{E+2*i}, v{E+2*i}, v{E+2*i+1}")
            a(f"ds_add_f32 v{VTMP}, v{E+2*i} offset:{256*i}")
        if zero:
            for i in range(32):
                a(f"v_mov_b32 v{T+i}, 0")

    bin_of(sG)
    a(f"s_mov_b32 s{sJ0}, s{sJ1}")
    a(f"s_mov_b32 s{sJT}, s{sJ1}")
    a(f"ds_read_u8 v{VD8}, v{VENT} offset:{ENTA + 6}")
    src_reads(1)
    a("s_waitcnt vmcnt(0)")
    for s in range(4):
        a(f"ds_read_b128 {vr(A+4*s,4)}, v{RA+s}")
    a(f"v_mov_b32 v{AK}, v{EAL}\nv_mov_b32 v{AK+1}, v{EAL+1}\nv_mov_b32 v{AK+4}, v{EAL+2}\nv_mov_b32 v{AK+5}, v{EAL+3}")
    a("s_waitcnt lgkmcnt(0)")
    h_dma()
    a(f"buffer_load_dword v15, v{VEOFF}, {sr(sEA,4)}, 0 offen")
    a(f"v_mad_u32_u24 v{VADR}, v{VD8}, v{VMUL}, v{VCST}")
    a(f"s_mov_b64 exec, {sr(sEXLO,2)}")
    a(f"ds_read_b128 {vr(AK,4)}, v{VADR}")
    a(f"s_mov_b64 exec, {sr(sEXHI,2)}")
    a(f"ds_read_b64 {vr(AK+2,2)}, v{VENT} offset:{ENTG}")
    quad_mask(sG)
    a("s_waitcnt lgkmcnt(0)")
    a(f"s_mov_b64 exec, {sr(sT0+4,2)}")
    a(f"ds_write_b64 v{VADR}, {vr(AK+2,2)}")
    a(f"ds_write_b16 v{VADR}, v{VONE}")
    a("s_mov_b64 exec, -1")
    for s in range(5):
        a(mf_s1(0, s, 0))
    a("s_nop 7")
    a("s_nop 7")

    def body(par):
        nx = par ^ 1
        u = uid[0]
        uid[0] += 1
        a(f"ds_read_u8 v{VD8}, v{VENT} offset:{ENTA + 256 + 6}")
        src_reads(2)
        a(f"ds_read_b32 v{VEOFF}, v{VENT} offset:{ENTA + 512}")
        k = 0
        for s in range(5):
            a(mf_s1(1, s, par))
            for _ in range(3):
                a(f"v_exp_f32 v{E+k}, v{D+k}")
                k += 1
        a(f"s_add_u32 s{sT0}, s{sG}, 1")
        a(f"s_cmp_lg_u32 s{sT0}, s{sNB}")
        a(f"s_cbranch_scc1 L2_nobin{u}")
        bin_of(sT0)
        a.label(f"L2_nobin{u}")
        a("s_waitcnt vmcnt(1) lgkmcnt(0)")
        for s in range(4):
            a(f"ds_read_b128 {vr(A+4*s,4)}, v{RA+s}")
        a(f"v_mad_u32_u24 v{VADR+nx}, v{VD8}, v{VMUL}, v{VCST}")
        a(f"v_exp_f32 v{E+15}, v{D+15}")
        a(f"s_mov_b64 exec, {sr(sEXLO,2)}")
        a(f"ds_read_b128 {vr(AK+4*nx,4)}, v{VADR+nx}")
        a(f"s_mov_b64 exec, {sr(sEXHI,2)}")
        a(f"ds_read_b64 {vr(AK+4*nx+2,2)}, v{VENT} offset:{ENTG + 256}")
        a("s_mov_b64 exec, -1")
        for i in range(8):
            a(f"v_pk_add_f32 {vr(E+2*i,2)}, {vr(E+2*i,2)}, 1.0 op_sel_hi:[1,0]")
        a(mf_s2(1, 0))
        for i in range(3):
            a(f"v_rcp_f32 v{E+i}, v{E+i}")
        a(mf_s2(1, 1))
        for i in range(3, 5):
            a(f"v_rcp_f32 v{E+i}, v{E+i}")
        a("s_waitcnt lgkmcnt(0)")
        h_dma()
        a(f"s_mov_b64 exec, {sr(sEXHI,2)}")
        a(f"buffer_load_dwordx2 {vr(AK+4*par,2)}, v{VEOFF}, {sr(sEA,4)}, 0 offen")
        a("s_mov_b64 exec, -1")
        for ks in range(2):
            for hf in range(2):
                a(f"ds_read_b64_tr_b16 {vr(S+4*ks+2*hf,2)}, v{TRA} offset:{1024*ks + 512*hf}")
        quad_mask(sT0)
        a(f"s_mov_b64 exec, {sr(sEXHI,2)}")
        a(f"ds_write_b64 v{VADR+par}, {vr(VZ,2)}")
        a(f"s_mov_b64 exec, {sr(sT0+4,2)}")
        a(f"ds_write_b64 v{VADR+nx}, {vr(AK+4*nx+2,2)}")
        a(f"ds_write_b16 v{VADR+nx}, v{VONE}")
        a("s_mov_b64 exec, -1")
        for i in range(5, 16):
            a(f"v_rcp_f32 v{E+i}, v{E+i}")
        a(f"v_add_u32 v{VENT}, 256, v{VENT}")
        a(f"v_add_u32 v{VSRC}, 256, v{VSRC}")
        for i in range(8):
            a(f"v_pk_mul_f32 {vr(E+2*i,2)}, {vr(E+2*i,2)}, {vr(D+2*i,2)}")
        for i in range(8):
            a(f"v_cvt_pk_bf16_f32 v{P+i}, v{E+2*i}, v{E+2*i+1}")
        a(f"s_cmp_eq_u32 s{sJ0}, s{sJT}")
        a(f"s_cbranch_scc1 L2_nofl{u}")
        flush(True)
        a(f"s_mov_b32 s{sJT}, s{sJ0}")
        a.label(f"L2_nofl{u}")
        a("s_waitcnt vmcnt(5) lgkmcnt(0)")
        k = 0
        for s in range(5):
            a(mf_s1(0, s, nx))
            for _ in range(3):
                a(f"v_exp_f32 v{E+k}, v{D+16+k}")
                k += 1
        a(f"v_exp_f32 v{E+15}, v{D+31}")
        a(f"s_mov_b32 s{sJ0}, s{sJ1}")
        a(f"s_mov_b32 s{sG}, s{sT0}")
        for i in range(8):
            a(f"v_pk_add_f32 {vr(E+2*i,2)}, {vr(E+2*i,2)}, 1.0 op_sel_hi:[1,0]")
        a(mf_s2(0, 0))
        for i in range(3):
            a(f"v_rcp_f32 v{E+i}, v{E+i}")
        a(mf_s2(0, 1))
        for i in range(3, 16):
            a(f"v_rcp_f32 v{E+i}, v{E+i}")
        a("s_nop 0")
        for i in range(8):
            a(f"v_pk_mul_f32 {vr(E+2*i,2)}, {vr(E+2*i,2)}, {vr(D+16+2*i,2)}")
        for i in range(8):
            a(f"v_cvt_pk_bf16_f32 v{P+8+i}, v{E+2*i}, v{E+2*i+1}")
        a(f"s_cmp_ge_u32 s{sG}, s{sG1}")

    a(".p2align 6")
    a.label("L2_loop")
    body(0)
    a("s_cbranch_scc1 L2_tail")
    body(1)
    a("s_cbranch_scc0 L2_loop")
    a.label("L2_tail")
    a("s_nop 1")
    a(mf_s2(1, 0))
    a(mf_s2(1, 1))
    a("s_nop 7")
    a("s_nop 7")
    flush(False)
    a.label("L2_wave_done")
    a(f"s_add_u32 s{sLO}, s{sLO}, s{sSPAN}")
    a(f"s_cmp_ge_u32 s{sLO}, 250")
    a("s_cbranch_scc1 L2_epi")
    a("s_waitcnt vmcnt(0) lgkmcnt(0)")
    a("s_barrier")
    a(f"s_cmp_eq_u32 s{sT0+11}, 0")
    a("s_cbranch_scc1 L2_r2")
    a("s_branch L2_r2fix")
    a.label("L2_r2")
    pos_dma()
    a("s_branch L2_round")
    a.label("L2_r2fix")
    srd(a, sM, 84, 85, 128)
    a(f"v_lshlrev_b32 v6, 1, v4")
    a(f"buffer_load_ushort v{WX}, v6, {sr(sM,4)}, 0 offen")
    a(f"buffer_load_ushort v{WX+1}, v6, {sr(sM,4)}, 0 offen offset:64")
    a("s_waitcnt vmcnt(0)")
    a(f"v_lshlrev_b32 v{WX}, 16, v{WX}")
    a(f"v_lshlrev_b32 v{WX+1}, 16, v{WX+1}")
    a(f"s_mov_b32 s{sT0+11}, 0")
    a("s_branch L2_r2")
    a.label("L2_overflow")
    a(f"s_lshr_b32 s{sSPAN}, s{sSPAN}, 1")
    a("s_waitcnt vmcnt(0) lgkmcnt(0)")
    a("s_barrier")
    a("s_branch L2_round")

    a.label("L2_epi")
    EW = X
    EH = X + 32
    EM = X + 48
    ED = X + 64
    ER = X + 80
    ET = X + 88
    a(f"s_mul_i32 s{sT0+2}, s{sB}, 40")
    a(f"s_cmp_ge_u32 s{sWAVE}, 4")
    a("s_cbranch_scc1 L2_epi_pos_pre")
    a("s_waitcnt vmcnt(0)")
    a(f"s_and_b32 s{sT0+3}, s{sWAVE}, 1")
    a(f"s_lshl_b32 s{sT0+4}, s{sT0+3}, 12")
    a(f"s_add_u32 s{sT0+4}, s{sT0+4}, {WHA}")
    a(f"s_add_u32 s{sT0+5}, s{sT0+4}, 8192")
    for s in range(4):
        a(f"buffer_load_dwordx4 {vr(EW+4*s,4)}, v3, {sr(sWT,4)}, s{sT0+4} offen offset:{1024*s}")
    for s in range(4):
        a(f"buffer_load_dwordx4 {vr(EW+16+4*s,4)}, v3, {sr(sWT,4)}, s{sT0+5} offen offset:{1024*s}")
    a(f"s_lshr_b32 s{sT0+6}, s{sWAVE}, 1")
    a(f"s_lshl_b32 s{sT0+6}, s{sT0+6}, 5")
    a(f"v_add_u32 v9, s{sT0+6}, v4")
    a(f"v_add_u32 v6, s{sT0+2}, v9")
    a(f"v_lshlrev_b32 v7, 4, v5")
    for s in range(4):
        a(f"buffer_load_dwordx4 {vr(EH+4*s,4)}, v[6:7], {sr(sH,4)}, 0 idxen offen offset:{32*s}")
    a(f"s_lshl_b32 s{sT0+7}, s{sT0+3}, 6")
    a(f"v_mov_b32 v10, v6")
    a(f"v_lshlrev_b32 v11, 3, v5")
    a(f"v_add_u32 v11, s{sT0+7}, v11")
    for q in range(4):
        a(f"buffer_load_dwordx2 {vr(ER+2*q,2)}, v[10:11], {sr(sH,4)}, 0 idxen offen offset:{16*q}")
    a(f"v_min_u32 v12, 39, v9")
    a(f"v_mul_u32_u24 v12, {ACCM_ROW}, v12")
    a(f"v_lshl_add_u32 v12, v5, 5, v12")
    a(f"v_add_u32 v12, {ACCM}, v12")
    a(f"v_lshl_add_u32 v13, v6, 7, v11")
    srd(a, sM, 86, 87, 1280000)
    a("s_waitcnt lgkmcnt(0)")
    a("s_barrier")
    for s in range(4):
        a(f"ds_read_b128 {vr(ET+8*s,4)}, v12 offset:{64*s}")
        a(f"ds_read_b128 {vr(ET+8*s+4,4)}, v12 offset:{64*s+16}")
    a("s_waitcnt vmcnt(4)")
    for s in range(4):
        cop = "0" if s == 0 else vr(ED, 16)
        a(f"v_mfma_f32_32x32x16_bf16 {vr(ED,16)}, {vr(EW+4*s,4)}, {vr(EH+4*s,4)}, {cop}")
    a("s_waitcnt lgkmcnt(0)")
    for i in range(32):
        a(f"v_mul_f32 v{ET+i}, {f32bits(-LN2):#x}, v{ET+i}")
    for i in range(16):
        a(f"v_cvt_pk_bf16_f32 v{EM+i}, v{ET+2*i}, v{ET+2*i+1}")
    a("s_nop 1")
    for s in range(4):
        a(f"v_mfma_f32_32x32x16_bf16 {vr(ED,16)}, {vr(EW+16+4*s,4)}, {vr(EM+4*s,4)}, {vr(ED,16)}")
    a("s_waitcnt vmcnt(0)")
    for q in range(8):
        a(f"v_lshlrev_b32 v{ET+16+2*q}, 16, v{ER+q}")
        a(f"v_and_b32 v{ET+17+2*q}, 0xffff0000, v{ER+q}")
    for i in range(16):
        a(f"v_mul_f32 v{ET+i}, {f32bits(-LOG2E):#x}, v{ED+i}")
    for i in range(16):
        a(f"v_exp_f32 v{ET+i}, v{ET+i}")
    for i in range(16):
        a(f"v_add_f32 v{ET+i}, 1.0, v{ET+i}")
    for i in range(16):
        a(f"v_rcp_f32 v{ET+i}, v{ET+i}")
    for i in range(16):
        a(f"v_fmac_f32 v{ET+16+i}, v{ET+i}, v{ED+i}")
    for i in range(8):
        a(f"v_cvt_pk_bf16_f32 v{ER+i}, v{ET+16+2*i}, v{ET+17+2*i}")
    a("v_cmpx_gt_u32 vcc, 40, v9")
    for q in range(4):
        a(f"buffer_store_dwordx2 {vr(ER+2*q,2)}, v13, {sr(sM,4)}, 0 offen offset:{16*q}")
    a("s_endpgm")

    a.label("L2_epi_pos_pre")
    a(f"v_subrev_u32 v6, 256, v0")
    a(f"v_mul_u32_u24 v7, 171, v6")
    a(f"v_lshrrev_b32 v7, 9, v7")
    a(f"v_mul_u32_u24 v8, 3, v7")
    a(f"v_sub_u32 v8, v6, v8")
    a(f"v_bfe_u32 v9, v7, 1, 2")
    a(f"v_mad_u32_u24 v9, v9, 3, v8")
    a(f"v_lshrrev_b32 v10, 3, v7")
    a(f"v_mul_u32_u24 v10, 1536, v10")
    a(f"v_lshrrev_b32 v11, 1, v9")
    a(f"v_lshl_add_u32 v10, v11, 8, v10")
    a(f"v_and_b32 v11, 1, v7")
    a(f"v_lshl_add_u32 v10, v11, 7, v10")
    a(f"v_and_b32 v11, 1, v9")
    a(f"v_lshl_add_u32 v10, v11, 6, v10")
    a(f"v_add_u32 v10, {ACCP}, v10")
    a(f"v_lshlrev_b32 v11, 4, v7")
    a(f"v_lshl_add_u32 v11, v8, 2, v11")
    a(f"v_add_u32 v11, {PD}, v11")
    srd(a, sM, 86, 87, 60000, add=1280000)
    a(f"s_mul_i32 s{sT0+3}, s{sB}, 240")
    a(f"v_lshlrev_b32 v12, 1, v6")
    a("s_waitcnt vmcnt(0) lgkmcnt(0)")
    a("s_barrier")
    a(f"s_cmp_ge_u32 s{sWAVE}, 6")
    a("s_cbranch_scc1 L2_done")
    a(f"v_cmpx_gt_u32 vcc, 120, v6")
    for i in range(4):
        a(f"ds_read_b128 {vr(ET+4*i,4)}, v10 offset:{16*i}")
    a(f"ds_read_b32 v13, v11")
    a("s_waitcnt lgkmcnt(0)")
    for st in (8, 4, 2, 1):
        for i in range(st):
            a(f"v_add_f32 v{ET+i}, v{ET+i}, v{ET+i+st}")
    a(f"v_fmac_f32 v13, {f32bits(-LN2):#x}, v{ET}")
    a(f"v_cvt_pk_bf16_f32 v13, v13, v13")
    a(f"buffer_store_short v13, v12, {sr(sM,4)}, s{sT0+3} offen")
    a.label("L2_done")
    a("s_endpgm")
    return dict(vgpr=NV, sgpr=NS, lds=LDS2)


HEADER = open("cdna_kernels/" + NAME + ".s.ref").read().split("\n")


def main(out):
    a1, a2 = Asm(), Asm()
    k1 = gen_k1(a1)
    k2 = gen_k2(a2)
    lines = []
    for ln in HEADER:
        if ln.startswith("; Override launch") or ln.startswith("; grid=ceil"):
            continue
        if ln.startswith("; @launch"):
            break
        lines.append(ln)
    lines.append(f"; @launch kernel=egnn_bin_kernel grid=(254,1,1) block=(640,1,1) lds={k1['lds']}")
    lines.append(f"; @launch kernel=egnn_main_kernel grid=(256,1,1) block=(512,1,1) lds={k2['lds']}")
    lines.append('.amdgcn_target "amdgcn-amd-amdhsa--gfx950"')
    lines.append(".text")
    for nm, asm in (("egnn_bin_kernel", a1), ("egnn_main_kernel", a2)):
        lines += [f".globl {nm}", ".p2align 8", f".type {nm},@function"]
        lines += [x for x in asm.l if x.strip()]
    lines.append('.section .rodata,"a"')
    for nm, k in (("egnn_bin_kernel", k1), ("egnn_main_kernel", k2)):
        nv = k["vgpr"]
        lines += [".p2align 6", f".amdhsa_kernel {nm}",
                  f"  .amdhsa_next_free_vgpr {nv}",
                  f"  .amdhsa_next_free_sgpr {k['sgpr']}",
                  f"  .amdhsa_accum_offset {(nv + 3) // 4 * 4}",
                  "  .amdhsa_group_segment_fixed_size 0",
                  "  .amdhsa_kernarg_size 88",
                  "  .amdhsa_user_sgpr_count 2",
                  "  .amdhsa_user_sgpr_kernarg_segment_ptr 1",
                  "  .amdhsa_system_sgpr_workgroup_id_x 1",
                  ".end_amdhsa_kernel"]
    open(out, "w").write("\n".join(lines) + "\n")


if __name__ == "__main__":
    main(sys.argv[1] if len(sys.argv) > 1 else "cdna_kernels/" + NAME + ".s")
```

```python
import sys, struct

NAME = "standalone__cheap_equivariant_egnn__graph"
LOG2E = 1.4426950408889634
LN2 = 0.6931471805599453


def f32bits(x):
    return struct.unpack("<I", struct.pack("<f", x))[0]


REC_OFF = 0
REC_BYTES = 250 * 10240
TAB_OFF = 2560000
TAB_BYTES = 250 * 250 * 16
WTAB_OFF = 3560448
WTAB_BYTES = 4 * 8192 + 1024
WT2, WT1, WHA, WHB, BKC = 0, 8192, 16384, 24576, 32768

CAPG = 90
CAP = CAPG * 32
ENTG = 0
ENTA = CAP * 8
STAGE = 2 * CAP * 8
DT = STAGE
AT = STAGE + 32768
OH = AT + 5120
PD = OH + 128
WT = PD + 640
TAG = WT + 128
POS = 84992
LDS2 = POS + 59 * 1024
SCR = POS
SLOT = POS + 16384
SLOT_SZ = 3584
MB = 0
MB_ROW = 144
ACCP = 8192
assert TAG + 64 <= POS and LDS2 <= 163840 and SLOT + 12 * SLOT_SZ <= LDS2


import os
STAMP = os.environ.get("STAMP", "0") == "1"
STAMP_OFF = 16 << 20
EXP = set(os.environ.get("EXP", "").split(","))


class Asm:
    def __init__(self):
        self.l = []
        self.nst = 0

    def stamp(self, vbase=240):
        if not STAMP:
            return
        self("s_memtime s[96:97]")
        self("s_waitcnt lgkmcnt(0)")
        self(f"v_writelane_b32 v{vbase}, s96, {self.nst}")
        self.nst += 1

    def stamp_out(self, ws_lo, slot_sgpr_expr, vbase=240):
        if not STAMP:
            return
        self("s_mov_b64 exec, -1")
        self(f"s_add_u32 s96, s{ws_lo}, {STAMP_OFF}")
        self(f"s_addc_u32 s97, s{ws_lo+1}, 0")
        self("s_and_b32 s97, s97, 0xffff")
        self("s_mov_b32 s98, 0x1000000")
        self("s_mov_b32 s99, 0x20000")
        self(f"v_lshlrev_b32 v{vbase+1}, 2, v0")
        self(f"s_lshl_b32 s100, s2, 12")
        self(f"buffer_store_dword v{vbase}, v{vbase+1}, s[96:99], s100 offen")

    def __call__(self, s):
        for x in s.strip("\n").split("\n"):
            self.l.append("    " + x.strip())

    def label(self, s):
        self.l.append(s + ":")

    def c(self, s):
        self.l.append("    ; " + s)


def vr(b, n=1):
    return f"v{b}" if n == 1 else f"v[{b}:{b + n - 1}]"


def sr(b, n=1):
    return f"s{b}" if n == 1 else f"s[{b}:{b + n - 1}]"


def srd(a, d, lo, hi, nbytes, add=0, stride=0):
    if add:
        a(f"s_add_u32 s{d}, s{lo}, {add}")
        a(f"s_addc_u32 s{d+1}, s{hi}, 0")
        a(f"s_and_b32 s{d+1}, s{d+1}, 0xffff")
    else:
        a(f"s_mov_b32 s{d}, s{lo}")
        a(f"s_and_b32 s{d+1}, s{hi}, 0xffff")
    if stride:
        a(f"s_or_b32 s{d+1}, s{d+1}, {stride << 16}")
    a(f"s_mov_b32 s{d+2}, {nbytes}")
    a(f"s_mov_b32 s{d+3}, 0x20000")


def wave_scan(a, regs):
    steps = ["row_shr:1 row_mask:0xf bank_mask:0xf bound_ctrl:0", "row_shr:2 row_mask:0xf bank_mask:0xf bound_ctrl:0",
             "row_shr:4 row_mask:0xf bank_mask:0xf bound_ctrl:0", "row_shr:8 row_mask:0xf bank_mask:0xf bound_ctrl:0",
             "row_bcast:15 row_mask:0xa bank_mask:0xf", "row_bcast:31 row_mask:0xc bank_mask:0xf"]
    a("s_nop 1")
    for st in steps:
        for r in regs:
            a(f"v_add_u32_dpp v{r}, v{r}, v{r} {st}")
        if len(regs) < 3:
            a(f"s_nop {2 - len(regs)}")


def gen_k1(a):
    HIST = 0
    SORT = 8192
    WTOT = SORT + 10240
    a.label("egnn_bin_kernel")
    a("s_cmp_ge_u32 s2, 254")
    a("s_cbranch_scc1 L1_done")
    a("s_cmp_ge_u32 s2, 250")
    a("s_cbranch_scc1 L1_prep")
    a("s_load_dwordx4 s[4:7], s[0:1], 24")
    a("s_load_dwordx2 s[8:9], s[0:1], 80")
    a("s_mul_i32 s3, s2, 10240")
    a("v_lshlrev_b32 v1, 4, v0")
    a("v_mov_b32 v20, 0\nv_mov_b32 v21, 0\nv_mov_b32 v22, 0\nv_mov_b32 v23, 0")
    a("v_lshrrev_b32 v2, 6, v0")
    a("s_mov_b32 s30, -40")
    a("v_readfirstlane_b32 s31, v2")
    a("s_waitcnt lgkmcnt(0)")
    srd(a, 12, 6, 7, 2560000)
    srd(a, 16, 4, 5, 2560000)
    a("buffer_load_dwordx4 v[4:7], v1, s[12:15], s3 offen")
    a("buffer_load_dwordx4 v[8:11], v1, s[16:19], s3 offen")
    srd(a, 20, 8, 9, REC_BYTES, add=REC_OFF)
    srd(a, 24, 8, 9, TAB_BYTES, add=TAB_OFF)
    a("v_cmp_gt_u32 vcc, 512, v0")
    a("s_and_saveexec_b64 s[28:29], vcc")
    a(f"ds_write_b128 v1, v[20:23] offset:{HIST}")
    a("s_mov_b64 exec, s[28:29]")
    a("v_mov_b32 v3, 1")
    a("v_lshlrev_b32 v24, 16, v0")
    a("s_waitcnt lgkmcnt(0)")
    a("s_barrier")
    a("s_waitcnt vmcnt(1)")
    for u in range(4):
        d = 4 + u
        a(f"v_mul_u32_u24 v12, 52429, v{d}")
        a(f"v_lshrrev_b32 v12, 21, v12")
        a(f"v_lshrrev_b32 v13, 3, v{d}")
        a(f"v_mad_u32_u24 v13, v12, 3, v13")
        a(f"v_lshlrev_b32 v{28+u}, 2, v13")
        a(f"ds_add_rtn_u32 v{32+u}, v{28+u}, v3 offset:{HIST}")
        a(f"v_mad_i32_i24 v{d}, v12, s30, v{d}")
        a(f"v_lshl_or_b32 v{d}, v{d}, 26, v24")
        if u:
            a(f"v_or_b32 v{d}, {u << 14}, v{d}")
    a("s_waitcnt lgkmcnt(0)")
    a("s_barrier")
    a("s_cmp_ge_u32 s31, 4")
    a("s_cbranch_scc1 L1_noscan1")
    a("v_lshlrev_b32 v14, 5, v0")
    a(f"ds_read_b128 v[36:39], v14 offset:{HIST}")
    a(f"ds_read_b32 v40, v14 offset:{HIST+16}")
    a("s_waitcnt lgkmcnt(0)")
    a("v_add_u32 v37, v36, v37")
    a("v_add_u32 v38, v37, v38")
    a("v_add_u32 v39, v38, v39")
    a("v_add_u32 v40, v39, v40")
    a("v_mov_b32 v41, v40")
    wave_scan(a, [41])
    a("s_lshl_b32 s32, s31, 2")
    a("v_mov_b32 v42, s32")
    a("s_mov_b32 exec_lo, 0\ns_mov_b32 exec_hi, 0x80000000")
    a(f"ds_write_b32 v42, v41 offset:{WTOT}")
    a("s_mov_b64 exec, -1")
    a("s_waitcnt lgkmcnt(0)")
    a.label("L1_noscan1")
    a("s_barrier")
    a("s_cmp_ge_u32 s31, 4")
    a("s_cbranch_scc1 L1_noscan2")
    a(f"ds_read_b128 v[44:47], v20 offset:{WTOT}")
    a("v_sub_u32 v41, v41, v40")
    a("s_waitcnt lgkmcnt(0)")
    a("v_readfirstlane_b32 s33, v44")
    a("v_readfirstlane_b32 s34, v45")
    a("v_readfirstlane_b32 s35, v46")
    a("s_cmp_ge_u32 s31, 1")
    a("s_cselect_b32 s33, s33, 0")
    a("s_cmp_ge_u32 s31, 2")
    a("s_cselect_b32 s34, s34, 0")
    a("s_cmp_ge_u32 s31, 3")
    a("s_cselect_b32 s35, s35, 0")
    a("s_add_u32 s33, s33, s34")
    a("s_add_u32 s33, s33, s35")
    a("v_add_u32 v48, s33, v41")
    a("v_add_u32 v49, v48, v36")
    a("v_add_u32 v50, v48, v37")
    a("v_add_u32 v51, v48, v38")
    a("v_add_u32 v52, v48, v39")
    a("v_add_u32 v53, v48, v40")
    a(f"ds_write_b128 v14, v[48:51] offset:{HIST}")
    a(f"ds_write_b32 v14, v52 offset:{HIST+16}")
    a("v_lshl_or_b32 v56, v49, 16, v48")
    a("v_lshl_or_b32 v57, v51, 16, v50")
    a("v_lshl_or_b32 v58, v53, 16, v52")
    a("v_mov_b32 v59, 0")
    a("s_mul_i32 s36, s2, 4000")
    a("v_cmp_gt_u32 vcc, 250, v0")
    a("s_and_saveexec_b64 s[28:29], vcc")
    a("buffer_store_dwordx4 v[56:59], v1, s[24:27], s36 offen")
    a("s_mov_b64 exec, s[28:29]")
    a("s_waitcnt lgkmcnt(0)")
    a.label("L1_noscan2")
    a("s_barrier")
    for u in range(4):
        a(f"ds_read_b32 v{36+u}, v{28+u} offset:{HIST}")
    a("s_waitcnt vmcnt(0)")
    for u in range(4):
        a(f"v_or_b32 v{4+u}, v{4+u}, v{8+u}")
    a("s_waitcnt lgkmcnt(0)")
    for u in range(4):
        a(f"v_add_lshl_u32 v{36+u}, v{36+u}, v{32+u}, 2")
        a(f"ds_write_b32 v{36+u}, v{4+u} offset:{SORT}")
    a("s_waitcnt lgkmcnt(0)")
    a("s_barrier")
    a(f"ds_read_b128 v[40:43], v1 offset:{SORT}")
    a("s_waitcnt lgkmcnt(0)")
    a("buffer_store_dwordx4 v[40:43], v1, s[20:23], s3 offen")
    a("s_endpgm")

    a.label("L1_prep")
    a("s_load_dwordx2 s[4:5], s[0:1], 40")
    a("s_load_dwordx2 s[6:7], s[0:1], 56")
    a("s_load_dwordx2 s[8:9], s[0:1], 80")
    a("s_sub_u32 s3, s2, 250")
    a("s_waitcnt lgkmcnt(0)")
    srd(a, 12, 4, 5, 133 * 128)
    srd(a, 16, 6, 7, 128 * 128)
    srd(a, 20, 8, 9, WTAB_BYTES, add=WTAB_OFF)
    a("s_cmp_ge_u32 s3, 2")
    a("s_cselect_b32 s24, s16, s12")
    a("s_cselect_b32 s25, s17, s13")
    a("s_cselect_b32 s26, s18, s14")
    a("s_mov_b32 s27, 0x20000")
    a("s_mov_b32 s28, 0")
    a("s_cmp_eq_u32 s3, 0")
    a("s_cselect_b32 s28, 8192, s28")
    a("s_cmp_eq_u32 s3, 3")
    a("s_cselect_b32 s28, 8192, s28")
    a("v_lshrrev_b32 v2, 6, v0")
    a("s_nop 0")
    a("v_readfirstlane_b32 s31, v2")
    a("s_nop 3")
    a("s_cmp_ge_u32 s31, 8")
    a("s_cbranch_scc1 L1_prep_bk")
    a("v_bfe_u32 v1, v0, 5, 3")
    a("v_lshlrev_b32 v1, 10, v1")
    a("v_lshrrev_b32 v2, 8, v0")
    a("v_lshl_add_u32 v1, v2, 6, v1")
    a("v_and_b32 v2, 31, v0")
    a("v_lshl_add_u32 v1, v2, 1, v1")
    for j in range(8):
        a(f"buffer_load_ushort v{8+j}, v1, s[24:27], s28 offen offset:{128*j}")
    a("v_lshlrev_b32 v3, 4, v0")
    a("s_lshl_b32 s29, s3, 13")
    a("s_waitcnt vmcnt(0)")
    a("s_cmp_eq_u32 s3, 0")
    a("s_cbranch_scc1 L1_prep_scale")
    for q in range(4):
        a(f"v_lshl_or_b32 v{16+q}, v{9+2*q}, 16, v{8+2*q}")
    a("buffer_store_dwordx4 v[16:19], v3, s[20:23], s29 offen")
    a("s_endpgm")
    a.label("L1_prep_scale")
    for j in range(8):
        a(f"v_lshlrev_b32 v{8+j}, 16, v{8+j}")
        a(f"v_mul_f32 v{8+j}, {f32bits(-LOG2E):#x}, v{8+j}")
    for q in range(4):
        a(f"v_cvt_pk_bf16_f32 v{16+q}, v{8+2*q}, v{9+2*q}")
    a("buffer_store_dwordx4 v[16:19], v3, s[20:23], s29 offen")
    a("s_endpgm")
    a.label("L1_prep_bk")
    a("s_cmp_lg_u32 s3, 0")
    a("s_cbranch_scc1 L1_done")
    a("s_cmp_lg_u32 s31, 8")
    a("s_cbranch_scc1 L1_done")
    a("v_and_b32 v2, 63, v0")
    a("v_lshlrev_b32 v1, 1, v2")
    a("s_mov_b32 s28, 16384")
    for j in range(5):
        a(f"buffer_load_ushort v{8+j}, v1, s[12:15], s28 offen offset:{128*j}")
    a("v_lshlrev_b32 v3, 4, v2")
    a(f"s_mov_b32 s29, {BKC}")
    a("s_waitcnt vmcnt(0)")
    for j in range(1, 5):
        a(f"v_lshlrev_b32 v{8+j}, 16, v{8+j}")
        a(f"v_mul_f32 v{8+j}, {f32bits(-LOG2E):#x}, v{8+j}")
    a("v_cvt_pk_bf16_f32 v16, v9, v10")
    a("v_cvt_pk_bf16_f32 v17, v11, v12")
    a("v_xor_b32 v18, 0x8000, v8")
    a("v_mov_b32 v19, 0")
    a("buffer_store_dwordx4 v[16:19], v3, s[20:23], s29 offen")
    a.label("L1_done")
    a("s_endpgm")
    return dict(vgpr=64, sgpr=40, lds=WTOT + 64)


def gen_k2(a):
    W = 16
    BK = W + 32
    T = BK + 8
    D = T + 32
    A = D + 32
    AK = A + 16
    S = AK + 8
    P = S + 8
    E = P + 16
    IDX = E + 16
    RA = IDX + 8
    TRA = RA + 4
    VSRC = TRA + 1
    VENT = VSRC + 1
    VD8 = VENT + 1
    VADR = VD8 + 1
    VMUL = VADR + 2
    VCST = VMUL + 1
    VZ = VCST + 1
    VZ += VZ & 1
    VEOFF = VZ + 2
    VONE = VEOFF + 1
    WX = VONE + 1
    VFL = WX + 2
    VFP = VFL + 1
    VAT = VFP + 1
    VTMP = VAT + 1
    TB = VTMP + 1
    TB += TB & 1
    TB += TB & 2
    VC = TB + 4
    VCB = VC + 1
    VDT = VCB + 1
    RM = VDT + 1
    RP = RM + 6
    NV = RP + 6
    LANE = 1
    assert NV <= 256
    X = T

    sH, sEA, sREC, sTAB, sWT, sM = 4, 8, 12, 16, 20, 24
    sB, sWAVE = 28, 29
    sLO, sSPAN = 30, 31
    sGB = 32
    sEND = 38
    sG, sG1, sJ0, sJ1, sJT, sNB, sBE = 44, 45, 46, 47, 48, 49, 50
    sSTG = 51
    sT0 = 52
    sMASK = 64
    sPTR = 76
    sEXLO, sEXHI = 90, 92
    NS = 96

    a.label("egnn_main_kernel")
    a("s_cmp_ge_u32 s2, 256")
    a("s_cbranch_scc1 L2_done")
    a("s_and_b32 s3, s2, 7")
    a("s_lshl_b32 s3, s3, 5")
    a(f"s_lshr_b32 s{sB}, s2, 3")
    a(f"s_add_u32 s{sB}, s{sB}, s3")
    a(f"s_cmp_ge_u32 s{sB}, 250")
    a("s_cbranch_scc1 L2_done")
    a(f"s_load_dwordx2 s[88:89], s[0:1], 80")
    a(f"s_load_dwordx4 s[76:79], s[0:1], 0")
    a(f"s_load_dwordx2 s[80:81], s[0:1], 16")
    a(f"s_load_dwordx2 s[84:85], s[0:1], 48")
    a(f"s_load_dwordx2 s[86:87], s[0:1], 64")
    a(f"v_and_b32 v{LANE}, 63, v0")
    a("v_lshrrev_b32 v2, 6, v0")
    a(f"v_lshrrev_b32 v{VC}, 1, v0")
    a(f"v_readfirstlane_b32 s{sWAVE}, v2")
    a(f"v_mul_u32_u24 v2, 4000, v{VC}")
    a(f"s_lshl_b32 s{sT0}, s{sB}, 4")
    a(f"v_lshlrev_b32 v3, 4, v{LANE}")
    a(f"v_and_b32 v4, 31, v0")
    a(f"v_bfe_u32 v5, v0, 5, 1")
    a(f"s_mov_b32 s{sEXLO}, -1\ns_mov_b32 s{sEXLO+1}, 0\ns_mov_b32 s{sEXHI}, 0\ns_mov_b32 s{sEXHI+1}, -1")
    a("s_waitcnt lgkmcnt(0)")
    a.stamp()
    srd(a, sTAB, 88, 89, TAB_BYTES, add=TAB_OFF)
    a(f"buffer_load_dwordx4 {vr(TB,4)}, v2, {sr(sTAB,4)}, s{sT0} offen")
    srd(a, sWT, 88, 89, WTAB_BYTES, add=WTAB_OFF)
    srd(a, sREC, 88, 89, REC_BYTES, add=REC_OFF)
    srd(a, sH, 76, 77, 10000, stride=128)
    srd(a, sEA, 80, 81, 5120000)

    HA = X
    W1 = X + 16
    PDv = X + 32

    def uniform_loads(nextra):
        for i in range(8):
            if i * 1024 < 4096:
                a(f"buffer_load_dwordx4 {vr(W+4*i,4)}, v3, {sr(sWT,4)}, 0 offen offset:{WT2 + i*1024}")
            else:
                a(f"s_mov_b32 s{sT0+1}, {WT2 + i*1024}")
                a(f"buffer_load_dwordx4 {vr(W+4*i,4)}, v3, {sr(sWT,4)}, s{sT0+1} offen")
        a(f"v_lshlrev_b32 v6, 4, v4")
        a(f"s_mov_b32 s{sT0+1}, {BKC}")
        a(f"buffer_load_dwordx4 {vr(BK,4)}, v6, {sr(sWT,4)}, s{sT0+1} offen")
        a(f"buffer_load_dwordx4 {vr(BK+4,4)}, v6, {sr(sWT,4)}, s{sT0+1} offen offset:512")
        srd(a, sM, 84, 85, 128)
        a(f"v_lshlrev_b32 v6, 1, v4")
        a(f"buffer_load_ushort v{WX}, v6, {sr(sM,4)}, 0 offen")
        a(f"buffer_load_ushort v{WX+1}, v6, {sr(sM,4)}, 0 offen offset:64")
        pos_dma()
        a(f"s_waitcnt vmcnt({nextra + 20})")

    def pos_dma():
        srd(a, sM, 78, 79, 60000)
        a(f"s_lshl_b32 s{sT0+1}, s{sWAVE}, 10")
        for i in range(8):
            a(f"s_add_u32 m0, s{sT0+1}, {POS}")
            a(f"s_nop 0")
            a(f"buffer_load_dwordx4 v3, {sr(sM,4)}, s{sT0+1} offen lds")
            if i < 7:
                a(f"s_add_u32 s{sT0+1}, s{sT0+1}, 8192")
            if i == 6:
                a(f"s_min_u32 s{sT0+1}, s{sT0+1}, {58*1024}")

    a(f"s_mul_i32 s{sT0+2}, s{sB}, 40")
    a(f"s_cmp_ge_u32 s{sWAVE}, 4")
    a("s_cbranch_scc1 L2_ld_b")
    a(f"s_lshr_b32 s{sT0+3}, s{sWAVE}, 1")
    a(f"s_lshl_b32 s{sT0+3}, s{sT0+3}, 5")
    a(f"s_add_u32 s{sT0+3}, s{sT0+3}, s{sT0+2}")
    a(f"v_add_u32 v6, s{sT0+3}, v4")
    a(f"v_lshlrev_b32 v7, 4, v5")
    for s in range(4):
        a(f"buffer_load_dwordx4 {vr(HA+4*s,4)}, v[6:7], {sr(sH,4)}, 0 idxen offen offset:{32*s}")
    a(f"s_and_b32 s{sT0+3}, s{sWAVE}, 1")
    a(f"s_lshl_b32 s{sT0+3}, s{sT0+3}, 12")
    a(f"s_add_u32 s{sT0+3}, s{sT0+3}, {WT1}")
    for s in range(4):
        a(f"buffer_load_dwordx4 {vr(W1+4*s,4)}, v3, {sr(sWT,4)}, s{sT0+3} offen offset:{1024*s}")
    uniform_loads(8)
    a("s_branch L2_ld_done")
    a.label("L2_ld_b")
    srd(a, sM, 78, 79, 60000)
    a(f"v_add_u32 v6, s{sT0+2}, v{LANE}")
    a(f"v_mul_u32_u24 v6, 6, v6")
    for i in range(3):
        a(f"buffer_load_ushort v{PDv+i}, v6, {sr(sM,4)}, 0 offen offset:{2*i}")
    uniform_loads(3)
    a.label("L2_ld_done")
    a.stamp()
    a(f"s_mov_b32 s{sLO}, 0")
    a(f"s_mov_b32 s{sSPAN}, 256")
    a(f"s_mov_b32 s{sT0+11}, 1")

    R = X + 36
    VREM = X + 52
    VRA = X + 53
    C0, C1, C2 = X + 54, X + 55, X + 56
    I0, I1, I2 = X + 57, X + 58, X + 59
    VI0 = X + 60
    Y = X + 64
    Q = X + 72
    Z4 = X + 88

    a.label("L2_round")
    a(f"v_and_b32 v{VI0}, 0xffff, v{TB}")
    a(f"v_and_b32 v6, 1, v0")
    a(f"v_lshl_add_u32 v{VI0}, v6, 2, v{VI0}")
    a(f"v_lshrrev_b32 v7, 16, v{TB+2}")
    a(f"v_sub_u32 v{VREM}, v7, v{VI0}")
    a(f"v_subrev_u32 v8, s{sLO}, v{VC}")
    a(f"v_cmp_gt_u32 {sr(sMASK,2)}, s{sSPAN}, v8")
    a(f"v_mul_u32_u24 v{VRA}, 10240, v{VC}")
    a(f"v_lshl_add_u32 v{VRA}, v{VI0}, 2, v{VRA}")
    a(f"v_cndmask_b32 v{VREM}, 0, v{VREM}, {sr(sMASK,2)}")

    def rec_loads():
        for k in range(4):
            a(f"v_cmpx_lt_i32 vcc, {8*k}, v{VREM}")
            a(f"buffer_load_dwordx4 {vr(R+4*k,4)}, v{VRA}, {sr(sREC,4)}, 0 offen offset:{32*k}")
        a("s_mov_b64 exec, -1")
    rec_loads()
    a(f"v_alignbit_b32 v8, v{TB+1}, v{TB}, 16")
    a(f"v_alignbit_b32 v9, v{TB+2}, v{TB+1}, 16")
    a(f"v_sub_u32 v{C0}, v8, v{TB}")
    a(f"v_sub_u32 v{C1}, v9, v{TB+1}")
    a(f"v_and_b32 v8, 0xffff, v{TB+2}")
    a(f"v_sub_u32 v8, v7, v8")
    a(f"v_and_b32 v9, 0xffff, v{TB}")
    a(f"v_sub_u32 v9, v7, v9")
    a(f"v_lshl_or_b32 v{C2}, v9, 12, v8")
    for c in (C0, C1, C2):
        a(f"v_cndmask_b32 v{c}, 0, v{c}, {sr(sMASK,2)}")
    a(f"v_cmp_eq_u32 {sr(sMASK+2,2)}, 0, v6")
    a("s_nop 1")
    for c, i in ((C0, I0), (C1, I1), (C2, I2)):
        a(f"v_cndmask_b32 v{i}, 0, v{c}, {sr(sMASK+2,2)}")
    wave_scan(a, [I0, I1, I2])
    a(f"s_lshl_b32 s{sT0}, s{sWAVE}, 4")
    a(f"s_add_u32 s{sT0}, s{sT0}, {WT}")
    a(f"v_mov_b32 v8, s{sT0}")
    a("s_mov_b32 exec_lo, 0\ns_mov_b32 exec_hi, 0x80000000")
    a(f"ds_write_b32 v8, v{I0}")
    a(f"ds_write_b32 v8, v{I1} offset:4")
    a(f"ds_write_b32 v8, v{I2} offset:8")
    a("s_mov_b64 exec, -1")
    a(f"s_cmp_eq_u32 s{sT0+11}, 0")
    a("s_cbranch_scc1 L2_noinit")
    for i in range(12):
        a(f"v_mov_b32 v{RM+i}, 0")
    a(f"v_mul_u32_u24 v{VCB}, 20480, v{VC}")
    a(f"v_lshlrev_b32 v{VDT}, 2, v0")
    a(f"v_add_u32 v{VDT}, {DT}, v{VDT}")
    a.label("L2_noinit")
    a("s_waitcnt lgkmcnt(0)")
    a("s_barrier")
    a.stamp()
    a(f"v_and_b32 v8, 7, v0")
    a(f"v_lshlrev_b32 v8, 4, v8")
    a(f"v_add_u32 v8, {WT}, v8")
    a(f"ds_read_b128 {vr(Q,4)}, v8")
    a(f"s_cmp_lg_u32 s{sWAVE}, 5")
    a("s_cbranch_scc1 L2_nooh")
    a(f"v_lshrrev_b32 v9, 3, v{LANE}")
    a(f"v_and_b32 v10, 7, v{LANE}")
    a(f"v_cmp_eq_u32 vcc, v9, v10")
    a(f"v_mov_b32 v10, 0x3f80")
    a(f"v_lshlrev_b32 v9, 1, v{LANE}")
    a(f"v_cndmask_b32 v10, 0, v10, vcc")
    a(f"v_add_u32 v9, {OH}, v9")
    a("ds_write_b16 v9, v10")
    a(f"v_lshlrev_b32 v9, 2, v{LANE}")
    a(f"v_add_u32 v9, {TAG}, v9")
    a(f"v_mov_b32 v10, 5")
    a("s_mov_b64 exec, 0xffff")
    a("ds_write_b32 v9, v10")
    a("s_mov_b64 exec, -1")
    a.label("L2_nooh")
    for c, i in ((C0, I0), (C1, I1), (C2, I2)):
        a(f"v_sub_u32 v{i}, v{i}, v{c}")
    a("s_waitcnt lgkmcnt(0)")
    for i in range(3):
        a(f"v_mov_b32 v{Q+4+i}, v{Q+i}")
    a("s_nop 1")
    for sh in (1, 2, 4):
        for i in range(3):
            a(f"v_add_u32_dpp v{Q+4+i}, v{Q+4+i}, v{Q+4+i} row_shr:{sh} row_mask:0xf bank_mask:0xf bound_ctrl:0")
    for i in range(3):
        a(f"v_sub_u32 v{Q+i}, v{Q+4+i}, v{Q+i}")
    a("s_nop 0")
    for i in range(3):
        a(f"v_readlane_b32 s{sT0+i}, v{Q+4+i}, 7")
    for i in range(3):
        a(f"v_readlane_b32 s{sT0+3+i}, v{Q+i}, s{sWAVE}")
    a(f"s_lshr_b32 s{sT0+6}, s{sT0+2}, 12")
    a(f"s_cmp_gt_u32 s{sT0+6}, {CAP}")
    a("s_cbranch_scc1 L2_overflow")
    a(f"s_and_b32 s{sEND}, s{sT0}, 0xffff")
    a(f"s_lshr_b32 s{sEND+1}, s{sT0}, 16")
    a(f"s_and_b32 s{sEND+2}, s{sT0+1}, 0xffff")
    a(f"s_lshr_b32 s{sEND+3}, s{sT0+1}, 16")
    a(f"s_and_b32 s{sEND+4}, s{sT0+2}, 0xfff")
    a(f"s_mov_b32 s{sEND+5}, 0")
    a(f"s_mov_b32 s{sGB}, 0")
    for j in range(5):
        a(f"s_add_u32 s{sT0+6}, s{sEND+j}, 31")
        a(f"s_lshr_b32 s{sT0+6}, s{sT0+6}, 5")
        a(f"s_add_u32 s{sGB+j+1}, s{sGB+j}, s{sT0+6}")
        if j:
            a(f"s_lshl_b32 s{sT0+6}, s{sGB+j}, 5")
            a(f"s_add_u32 s{sEND+j}, s{sEND+j}, s{sT0+6}")
    a(f"s_cmp_gt_u32 s{sGB+5}, {CAPG}")
    a("s_cbranch_scc1 L2_overflow")
    a(f"s_lshl_b32 s{sT0+6}, s{sGB+1}, 21")
    a(f"s_add_u32 s{sT0+3}, s{sT0+3}, s{sT0+6}")
    a(f"s_lshl_b32 s{sT0+6}, s{sGB+3}, 21")
    a(f"s_add_u32 s{sT0+4}, s{sT0+4}, s{sT0+6}")
    a(f"s_lshl_b32 s{sT0+6}, s{sGB+2}, 5")
    a(f"s_add_u32 s{sT0+4}, s{sT0+4}, s{sT0+6}")
    a(f"s_and_b32 s{sT0+5}, s{sT0+5}, 0xfff")
    a(f"s_lshl_b32 s{sT0+6}, s{sGB+4}, 5")
    a(f"s_add_u32 s{sT0+5}, s{sT0+5}, s{sT0+6}")
    a(f"v_lshl_or_b32 v8, v{VI0}, 16, v{VI0}")
    a(f"v_add3_u32 v9, v{I0}, s{sT0+3}, v8")
    a(f"v_sub_u32 v9, v9, v{TB}")
    a(f"v_add3_u32 v10, v{I1}, s{sT0+4}, v8")
    a(f"v_sub_u32 v10, v10, v{TB+1}")
    a(f"v_and_b32 v11, 0xfff, v{I2}")
    a(f"v_add3_u32 v11, v11, s{sT0+5}, v{VI0}")
    a(f"v_and_b32 v12, 0xffff, v{TB+2}")
    a(f"v_sub_u32 v11, v11, v12")
    a(f"v_and_b32 v{Y}, 0xffff, v9")
    a(f"v_lshrrev_b32 v{Y+1}, 16, v9")
    a(f"v_and_b32 v{Y+2}, 0xffff, v10")
    a(f"v_lshrrev_b32 v{Y+3}, 16, v10")
    a(f"v_lshlrev_b32 v{Y+4}, 3, v11")
    for j in range(4):
        a(f"v_lshlrev_b32 v{Y+j}, 3, v{Y+j}")

    def dt_write():
        for j in range(5):
            a(f"ds_write_b32 v{VDT}, v{Y+j} offset:{2048*j}")
    dt_write()
    a(f"s_cmp_ge_u32 s{sWAVE}, 5")
    a("s_cbranch_scc1 L2_nopad")
    a(f"s_mov_b32 m0, s{sWAVE}")
    a("s_nop 0")
    a(f"s_movrels_b32 s{sT0+6}, s{sEND}")
    a(f"s_movrels_b32 s{sT0+7}, s{sGB+1}")
    a(f"s_lshl_b32 s{sT0+7}, s{sT0+7}, 5")
    a(f"v_add_u32 v8, s{sT0+6}, v{LANE}")
    a(f"v_mov_b32 v10, 0x7ff00000")
    a(f"v_mov_b32 v11, 10000")
    a(f"v_lshlrev_b32 v9, 3, v8")
    a(f"v_cmpx_gt_u32 vcc, s{sT0+7}, v8")
    a(f"ds_write_b64 v9, v[10:11] offset:{ENTG}")
    a("s_mov_b64 exec, -1")
    a.label("L2_nopad")
    a(f"s_cmp_eq_u32 s{sT0+11}, 0")
    a("s_cbranch_scc1 L2_noap")
    a(f"s_cmp_gt_u32 s{sWAVE}, 4")
    a("s_cbranch_scc1 L2_noap")
    a("s_waitcnt vmcnt(4)")
    a(f"s_cmp_eq_u32 s{sWAVE}, 4")
    a("s_cbranch_scc1 L2_pd")
    AD = X + 96
    for s in range(4):
        cop = "0" if s == 0 else vr(AD, 16)
        a(f"v_mfma_f32_32x32x16_bf16 {vr(AD,16)}, {vr(HA+4*s,4)}, {vr(W1+4*s,4)}, {cop}")
    a(f"s_lshr_b32 s{sT0+6}, s{sWAVE}, 1")
    a(f"s_lshl_b32 s{sT0+6}, s{sT0+6}, 12")
    a(f"s_and_b32 s{sT0+7}, s{sWAVE}, 1")
    a(f"s_lshl_b32 s{sT0+7}, s{sT0+7}, 9")
    a(f"s_add_u32 s{sT0+6}, s{sT0+6}, s{sT0+7}")
    a(f"s_add_u32 s{sT0+6}, s{sT0+6}, {AT}")
    a(f"v_lshlrev_b32 v8, 4, v4")
    a(f"v_lshl_add_u32 v8, v5, 3, v8")
    a(f"v_add_u32 v8, s{sT0+6}, v8")
    a("s_nop 7")
    a("s_nop 3")
    for q in range(4):
        if q == 1:
            a(f"s_cmp_ge_u32 s{sWAVE}, 2")
            a("s_cbranch_scc1 L2_noap")
        for r in range(4):
            a(f"v_mul_f32 v{AD+4*q+r}, {f32bits(-LOG2E):#x}, v{AD+4*q+r}")
        a(f"v_cvt_pk_bf16_f32 v{AD+4*q}, v{AD+4*q}, v{AD+4*q+1}")
        a(f"v_cvt_pk_bf16_f32 v{AD+4*q+1}, v{AD+4*q+2}, v{AD+4*q+3}")
        a(f"ds_write_b64 v8, {vr(AD+4*q,2)} offset:{1024*q}")
    a("s_branch L2_noap")
    a.label("L2_pd")
    for i in range(3):
        a(f"v_lshlrev_b32 v{PDv+i}, 16, v{PDv+i}")
    a(f"v_add_u32 v8, {PD}, v3")
    a(f"v_cmpx_gt_u32 vcc, 40, v{LANE}")
    a(f"ds_write_b64 v8, {vr(PDv,2)}")
    a(f"ds_write_b32 v8, v{PDv+2} offset:8")
    a("s_mov_b64 exec, -1")
    a.label("L2_noap")

    a.stamp()
    a.label("L2_place")
    a("s_waitcnt vmcnt(0)")
    a.stamp()
    for half in range(2):
        if half:
            a(f"v_cmp_lt_i32 vcc, 16, v{VREM}")
            a("s_cbranch_vccz L2_placed")
        for i in range(8):
            r = R + 8 * half + i
            a(f"v_lshrrev_b32 v{Q+i}, 29, v{r}")
            a(f"v_lshl_add_u32 v{Q+i}, v{Q+i}, 11, v{VDT}")
            a(f"ds_read_b32 v{Q+i}, v{Q+i}")
        for i in range(8):
            r = R + 8 * half + i
            k, u = (8 * half + i) // 4, i % 4
            n = 8 * k + u
            a(f"v_cmpx_lt_i32 vcc, {n}, v{VREM}")
            a(f"s_waitcnt lgkmcnt(7)")
            a(f"ds_write2_b32 v{Q+i}, v{VCB}, v{r} offset0:{2*n} offset1:{2*n+1}")
        a("s_mov_b64 exec, -1")
    a(f"v_cmp_lt_i32 vcc, 32, v{VREM}")
    a("s_cbranch_vccz L2_placed")
    a(f"v_subrev_u32 v{VREM}, 32, v{VREM}")
    a(f"v_add_u32 v{VRA}, 128, v{VRA}")
    rec_loads()
    for j in range(5):
        a(f"v_add_u32 v{Y+j}, 256, v{Y+j}")
    dt_write()
    a("s_branch L2_place")
    a.label("L2_placed")
    a("s_waitcnt lgkmcnt(0)")
    a("s_barrier")
    a.stamp()

    a(f"s_mul_i32 s{sG}, s{sGB+5}, s{sWAVE}")
    a(f"s_add_u32 s{sG1}, s{sG}, s{sGB+5}")
    a(f"s_lshr_b32 s{sG}, s{sG}, 3")
    a(f"s_lshr_b32 s{sG1}, s{sG1}, 3")
    a(f"s_lshl_b32 s{sSTG}, s{sWAVE}, 12")
    a(f"s_add_u32 s{sSTG}, s{sSTG}, {STAGE}")
    a(f"s_sub_u32 s{sT0}, s{sG1}, s{sG}")
    a(f"s_lshl_b32 s{sT0}, s{sT0}, 5")
    a(f"s_lshl_b32 s{sT0+1}, s{sG}, 8")
    NIT = 6
    CV = X
    a(f"v_lshlrev_b32 v8, 3, v{LANE}")
    a(f"v_add_u32 v8, s{sT0+1}, v8")
    for it in range(NIT):
        a(f"ds_read_b64 {vr(CV+16*it,2)}, v8 offset:{ENTG + 512*it}")
    a(f"v_lshlrev_b32 v{VENT}, 3, v4")
    a(f"v_add_u32 v{VENT}, s{sT0+1}, v{VENT}")
    a(f"v_lshrrev_b32 v9, 3, v{LANE}")
    a(f"v_lshlrev_b32 v{VSRC}, 3, v9")
    a(f"v_add_u32 v{VSRC}, s{sT0+1}, v{VSRC}")
    a(f"v_lshrrev_b32 v9, 1, v9")
    a(f"v_and_b32 v10, 7, v0")
    a(f"v_xor_b32 v10, v10, v9")
    a(f"v_lshlrev_b32 v{IDX+1}, 4, v10")
    a(f"v_xor_b32 v{IDX+3}, 64, v{IDX+1}")
    a(f"v_mov_b32 v{IDX+5}, v{IDX+1}")
    a(f"v_mov_b32 v{IDX+7}, v{IDX+3}")
    for it in range(NIT):
        a(f"v_add_u32 v9, {64*it}, v{LANE}")
        a(f"v_cmp_gt_u32 {sr(sMASK+2*it,2)}, s{sT0}, v9")
    a(f"s_mov_b32 s{sT0+2}, {POS}")
    a(f"s_mov_b32 s{sT0+3}, {PD}")

    def conv_decode(it):
        b = CV + 16 * it
        cb, rec = b, b + 1
        a(f"s_waitcnt lgkmcnt({min(15, (NIT-1-it) + 3*it + (7 if it else 0))})" if False else "s_waitcnt lgkmcnt(0)" if it == 0 else "")
        a(f"v_and_b32 v{b+9}, 0x3fff, v{rec}")
        a(f"v_mad_u32_u24 v{b+11}, v{b+9}, 6, s{sT0+2}")
        a(f"v_and_b32 v{b+11}, -4, v{b+11}")
        a(f"ds_read2_b32 {vr(b+2,2)}, v{b+11} offset0:0 offset1:1")
        a(f"v_lshrrev_b32 v{b+12}, 26, v{rec}")
        a(f"v_lshl_add_u32 v{b+11}, v{b+12}, 4, s{sT0+3}")
        a(f"ds_read_b128 {vr(b+4,4)}, v{b+11}")
        a(f"v_lshlrev_b32 v{b+10}, 4, v{rec}")
        a(f"v_and_b32 v{b+12}, 7, v{b+12}")
        a(f"v_lshl_or_b32 v{b+9}, v{b+12}, 19, v{b+9}")
        a(f"v_bfe_u32 v{b+8}, v{rec}, 14, 12")
        a(f"v_lshl_add_u32 v{b+8}, v{b+8}, 3, v{cb}")
        a(f"s_mov_b64 exec, {sr(sMASK+2*it,2)}")
        a(f"ds_write_b64 v8, {vr(b+8,2)} offset:{ENTA + 512*it}")
        a("s_mov_b64 exec, -1")

    def conv_geo(it):
        b = CV + 16 * it
        a(f"v_alignbit_b32 v{b+11}, v{b+3}, v{b+2}, v{b+10}")
        a(f"v_lshrrev_b32 v{b+12}, v{b+10}, v{b+3}")
        a(f"v_dot2_f32_bf16 v{b+4}, v{b+11}, v12, v{b+4}")
        a(f"v_dot2_f32_bf16 v{b+5}, v{b+11}, v13, v{b+5}")
        a(f"v_dot2_f32_bf16 v{b+6}, v{b+12}, v12, v{b+6}")
        a("s_nop 2")
        a(f"v_mul_f32 v{b+11}, v{b+4}, v{b+4}")
        a(f"v_fmac_f32 v{b+11}, v{b+5}, v{b+5}")
        a(f"v_fmac_f32 v{b+11}, v{b+6}, v{b+6}")
        a(f"v_cvt_pk_bf16_f32 v{b+9}, v{b+5}, v{b+6}")
        a(f"v_mul_f32 v{b+11}, {f32bits(LOG2E):#x}, v{b+11}")
        a(f"v_cvt_pk_bf16_f32 v{b+8}, v{b+11}, v{b+4}")
        a(f"s_mov_b64 exec, {sr(sMASK+2*it,2)}")
        a(f"ds_write_b64 v8, {vr(b+8,2)} offset:{ENTG + 512*it}")
        a("s_mov_b64 exec, -1")

    def src_reads(goff):
        for i in range(4):
            a(f"ds_read_u16 v{IDX+2*i}, v{VSRC} offset:{ENTA + 256*goff + 64*i + 4}")

    def h_dma():
        for i in range(4):
            a(f"s_add_u32 m0, s{sSTG}, {1024*i}")
            a("s_nop 0")
            a(f"buffer_load_dwordx4 {vr(IDX+2*i,2)}, {sr(sH,4)}, 0 idxen offen lds")

    assert AK == X + 80
    conv_decode(0)
    src_reads(0)
    a(f"ds_read_b32 v{VEOFF}, v{VENT} offset:{ENTA}")
    a(f"ds_read_b32 v{VTMP}, v{VENT} offset:{ENTA + 256}")
    a("s_waitcnt lgkmcnt(0)")
    h_dma()
    EAL = X + 112
    a(f"buffer_load_dwordx2 {vr(EAL,2)}, v{VEOFF}, {sr(sEA,4)}, 0 offen")
    a(f"buffer_load_dwordx2 {vr(EAL+2,2)}, v{VTMP}, {sr(sEA,4)}, 0 offen")
    for it in range(1, NIT):
        conv_decode(it)
    a(f"v_mov_b32 v12, 0x0000bf80")
    a(f"v_mov_b32 v13, 0xbf800000")
    a("s_waitcnt lgkmcnt(0)")
    for it in range(NIT):
        conv_geo(it)
    a("s_waitcnt lgkmcnt(0)")
    a.stamp()
    a("s_barrier")
    a.stamp()
    a(f"s_cmp_ge_u32 s{sG}, s{sG1}")
    a("s_cbranch_scc1 L2_wave_done")

    a(f"v_mov_b32 v{VZ}, 0\nv_mov_b32 v{VZ+1}, 0")
    for i in range(32):
        a(f"v_mov_b32 v{T+i}, 0")
    a(f"s_lshl_b32 s{sT0}, s{sWAVE}, 11")
    a(f"s_add_u32 s{sT0}, s{sT0}, {SCR}")
    a(f"v_add_u32 v9, s{sT0}, v3")
    a(f"ds_write_b128 v9, {vr(T,4)}")
    a(f"ds_write_b128 v9, {vr(T,4)} offset:1024")
    a(f"v_lshlrev_b32 v{TRA}, 8, v5")
    a(f"v_bfe_u32 v9, v0, 2, 2")
    a(f"v_lshl_add_u32 v{TRA}, v9, 6, v{TRA}")
    a(f"v_bfe_u32 v9, v0, 4, 1")
    a(f"v_lshl_add_u32 v{TRA}, v9, 5, v{TRA}")
    a(f"v_and_b32 v9, 3, v0")
    a(f"v_lshl_add_u32 v{TRA}, v9, 3, v{TRA}")
    a(f"v_add_u32 v{TRA}, s{sT0}, v{TRA}")
    a(f"v_sub_u32 v{VMUL}, 2, v5")
    a(f"v_lshlrev_b32 v9, 6, v4")
    a(f"v_add_u32 v9, s{sT0}, v9")
    a(f"v_mov_b32 v{VCST}, {OH}")
    a(f"v_cndmask_b32 v{VCST}, v{VCST}, v9, {sr(sEXHI,2)}")
    a(f"v_bfe_u32 v9, v0, 1, 3")
    a(f"v_xor_b32 v9, v9, v5")
    a(f"v_lshlrev_b32 v9, 4, v9")
    a(f"v_lshl_add_u32 v9, v4, 7, v9")
    for s in range(4):
        a(f"v_xor_b32 v{RA+s}, {32*s}, v9")
        a(f"v_add_u32 v{RA+s}, s{sSTG}, v{RA+s}")
    a(f"v_mov_b32 v{VONE}, 0x3f80")
    a(f"v_lshlrev_b32 v{VAT}, 4, v4")
    a(f"v_add_u32 v{VAT}, {AT}, v{VAT}")
    a(f"s_mul_i32 s{sT0+1}, s{sWAVE}, {SLOT_SZ}")
    a(f"s_add_u32 s{sT0+1}, s{sT0+1}, {SLOT}")
    a(f"v_lshlrev_b32 v{VFL}, 8, v5")
    a(f"v_lshl_add_u32 v{VFL}, v4, 2, v{VFL}")
    a(f"v_add_u32 v{VFL}, s{sT0+1}, v{VFL}")
    a(f"v_lshlrev_b32 v{VFP}, 2, v{LANE}")
    a(f"v_add_u32 v{VFP}, s{sT0+1}, v{VFP}")
    a(f"s_cmp_eq_u32 s{sT0+11}, 0")
    a("s_cbranch_scc1 L2_nowx")
    a(f"v_lshlrev_b32 v{WX}, 16, v{WX}")
    a(f"v_lshlrev_b32 v{WX+1}, 16, v{WX+1}")
    a.label("L2_nowx")
    for i in range(8):
        a(f"v_mov_b32 v{S+i}, 0")
        a(f"v_mov_b32 v{P+8+i}, 0")

    uid = [0]

    def bin_of(sg_expr_reg):
        a(f"s_mov_b32 s{sJ1}, 0")
        for k in range(1, 6):
            a(f"s_cmp_ge_u32 s{sg_expr_reg}, s{sGB+k}")
            a(f"s_addc_u32 s{sJ1}, s{sJ1}, 0")
        a(f"s_mov_b32 m0, s{sJ1}")
        a(f"s_lshl_b32 s{sT0+1}, s{sJ1}, 10")
        a(f"s_movrels_b32 s{sNB}, s{sGB+1}")
        a(f"s_movrels_b32 s{sBE}, s{sEND}")
        a(f"s_cmp_eq_u32 s{sJ1}, 5")
        a(f"s_cselect_b32 s{sNB}, -1, s{sNB}")
        a(f"v_add_u32 v{VTMP}, s{sT0+1}, v{VAT}")
        a(f"s_mov_b64 exec, {sr(sEXLO,2)}")
        a(f"ds_read_b128 {vr(BK,4)}, v{VTMP}")
        a(f"ds_read_b128 {vr(BK+4,4)}, v{VTMP} offset:512")
        a("s_mov_b64 exec, -1")

    def quad_mask(sg_reg):
        a(f"s_lshl_b32 s{sT0+2}, s{sg_reg}, 5")
        a(f"s_sub_i32 s{sT0+2}, s{sBE}, s{sT0+2}")
        a(f"s_bfm_b32 s{sT0+5}, s{sT0+2}, 0")
        a(f"s_cmp_ge_i32 s{sT0+2}, 32")
        a(f"s_cselect_b32 s{sT0+5}, -1, s{sT0+5}")
        a(f"s_cmp_ge_u32 s{sg_reg}, s{sG1}")
        a(f"s_cselect_b32 s{sT0+5}, 0, s{sT0+5}")
        a(f"s_mov_b32 s{sT0+4}, 0")

    def mf_s1(t, s, par):
        cop = "0" if s == 0 else vr(D + 16 * t, 16)
        if s < 4:
            return f"v_mfma_f32_32x32x16_bf16 {vr(D+16*t,16)}, {vr(A+4*s,4)}, {vr(W+(t*4+s)*4,4)}, {cop}"
        return f"v_mfma_f32_32x32x16_bf16 {vr(D+16*t,16)}, {vr(AK+4*par,4)}, {vr(BK+4*t,4)}, {cop}"

    def mf_s2(t, ks):
        return f"v_mfma_f32_32x32x16_bf16 {vr(T+16*t,16)}, {vr(S+4*ks,4)}, {vr(P+8*t+4*ks,4)}, {vr(T+16*t,16)}"

    def flush(zero):
        a(f"s_mul_i32 s{sT0+1}, s{sJT}, {SLOT_SZ}")
        a(f"v_add_u32 v{VTMP}, s{sT0+1}, v{VFL}")
        for t in range(2):
            for q in range(4):
                a(f"ds_write_b32 v{VTMP}, v{T+16*t+4*q} offset:{q*512 + t*128}")
        regs = [4 * q + c for q in range(4) for c in (1, 2, 3)]
        for i, r in enumerate(regs):
            a(f"v_mul_f32 v{E+i}, v{T+r}, v{WX}")
        for i, r in enumerate(regs):
            a(f"v_fmac_f32 v{E+i}, v{T+16+r}, v{WX+1}")
        a(f"v_add_u32 v{VTMP}, s{sT0+1}, v{VFP}")
        a(f"s_add_u32 s{sT0+1}, s{sJT}, s{sWAVE}")
        a(f"s_lshl_b32 s{sT0+1}, s{sT0+1}, 2")
        a(f"s_add_u32 s{sT0+1}, s{sT0+1}, {TAG}")
        for i in range(6):
            a(f"v_permlane16_swap_b32 v{E+2*i}, v{E+2*i+1}")
        a(f"v_mov_b32 v{E+12}, s{sT0+1}")
        a(f"v_mov_b32 v{E+13}, s{sJT}")
        for i in range(6):
            a(f"v_add_f32 v{E+2*i}, v{E+2*i}, v{E+2*i+1}")
            a(f"ds_write_b32 v{VTMP}, v{E+2*i} offset:{2048 + 256*i}")
        a(f"ds_write_b32 v{E+12}, v{E+13}")
        if zero:
            for i in range(32):
                a(f"v_mov_b32 v{T+i}, 0")

    bin_of(sG)
    a(f"s_mov_b32 s{sJ0}, s{sJ1}")
    a(f"s_mov_b32 s{sJT}, s{sJ1}")
    a(f"ds_read_u8 v{VD8}, v{VENT} offset:{ENTA + 6}")
    src_reads(1)
    a("s_waitcnt vmcnt(0)")
    for s in range(4):
        a(f"ds_read_b128 {vr(A+4*s,4)}, v{RA+s}")
    a(f"v_mov_b32 v{AK}, v{EAL}\nv_mov_b32 v{AK+1}, v{EAL+1}\nv_mov_b32 v{AK+4}, v{EAL+2}\nv_mov_b32 v{AK+5}, v{EAL+3}")
    a("s_waitcnt lgkmcnt(0)")
    h_dma()
    a(f"buffer_load_dword v15, v{VEOFF}, {sr(sEA,4)}, 0 offen")
    a(f"v_mad_u32_u24 v{VADR}, v{VD8}, v{VMUL}, v{VCST}")
    a(f"s_mov_b64 exec, {sr(sEXLO,2)}")
    a(f"ds_read_b128 {vr(AK,4)}, v{VADR}")
    a(f"s_mov_b64 exec, {sr(sEXHI,2)}")
    a(f"ds_read_b64 {vr(AK+2,2)}, v{VENT} offset:{ENTG}")
    quad_mask(sG)
    a("s_waitcnt lgkmcnt(0)")
    a(f"s_mov_b64 exec, {sr(sT0+4,2)}")
    a(f"ds_write_b64 v{VADR}, {vr(AK+2,2)}")
    a(f"ds_write_b16 v{VADR}, v{VONE}")
    a("s_mov_b64 exec, -1")
    for s in range(5):
        a(mf_s1(0, s, 0))
    a("s_nop 7")
    a("s_nop 7")

    def body(par):
        nx = par ^ 1
        u = uid[0]
        uid[0] += 1
        a(f"ds_read_u8 v{VD8}, v{VENT} offset:{ENTA + 256 + 6}")
        src_reads(2)
        a(f"ds_read_b32 v{VEOFF}, v{VENT} offset:{ENTA + 512}")
        k = 0
        for s in range(5):
            a(mf_s1(1, s, par))
            for _ in range(3):
                a(f"v_exp_f32 v{E+k}, v{D+k}")
                k += 1
        a(f"s_add_u32 s{sT0}, s{sG}, 1")
        a(f"s_cmp_lg_u32 s{sT0}, s{sNB}")
        a(f"s_cbranch_scc1 L2_nobin{u}")
        bin_of(sT0)
        a.label(f"L2_nobin{u}")
        a("s_waitcnt vmcnt(1) lgkmcnt(0)")
        for s in range(4):
            if "noa" not in EXP:
                a(f"ds_read_b128 {vr(A+4*s,4)}, v{RA+s}")
        a(f"v_mad_u32_u24 v{VADR+nx}, v{VD8}, v{VMUL}, v{VCST}")
        a(f"v_exp_f32 v{E+15}, v{D+15}")
        a(f"s_mov_b64 exec, {sr(sEXLO,2)}")
        a(f"ds_read_b128 {vr(AK+4*nx,4)}, v{VADR+nx}")
        a(f"s_mov_b64 exec, {sr(sEXHI,2)}")
        a(f"ds_read_b64 {vr(AK+4*nx+2,2)}, v{VENT} offset:{ENTG + 256}")
        a("s_mov_b64 exec, -1")
        for i in range(8):
            a(f"v_pk_add_f32 {vr(E+2*i,2)}, {vr(E+2*i,2)}, 1.0 op_sel_hi:[1,0]")
        a(mf_s2(1, 0))
        for i in range(3):
            a(f"v_rcp_f32 v{E+i}, v{E+i}")
        a(mf_s2(1, 1))
        for i in range(3, 5):
            a(f"v_rcp_f32 v{E+i}, v{E+i}")
        a("s_waitcnt lgkmcnt(0)")
        if "nodma" not in EXP:
            h_dma()
        a(f"s_mov_b64 exec, {sr(sEXHI,2)}")
        if "noea" not in EXP:
            a(f"buffer_load_dwordx2 {vr(AK+4*par,2)}, v{VEOFF}, {sr(sEA,4)}, 0 offen")
        a("s_mov_b64 exec, -1")
        for ks in range(2):
            for hf in range(2):
                if "notr" not in EXP:
                    a(f"ds_read_b64_tr_b16 {vr(S+4*ks+2*hf,2)}, v{TRA} offset:{1024*ks + 512*hf}")
        quad_mask(sT0)
        a(f"s_mov_b64 exec, {sr(sEXHI,2)}")
        a(f"ds_write_b64 v{VADR+par}, {vr(VZ,2)}")
        a(f"s_mov_b64 exec, {sr(sT0+4,2)}")
        a(f"ds_write_b64 v{VADR+nx}, {vr(AK+4*nx+2,2)}")
        a(f"ds_write_b16 v{VADR+nx}, v{VONE}")
        a("s_mov_b64 exec, -1")
        for i in range(5, 16):
            a(f"v_rcp_f32 v{E+i}, v{E+i}")
        a(f"v_add_u32 v{VENT}, 256, v{VENT}")
        a(f"v_add_u32 v{VSRC}, 256, v{VSRC}")
        for i in range(8):
            a(f"v_pk_mul_f32 {vr(E+2*i,2)}, {vr(E+2*i,2)}, {vr(D+2*i,2)}")
        for i in range(8):
            a(f"v_cvt_pk_bf16_f32 v{P+i}, v{E+2*i}, v{E+2*i+1}")
        a(f"s_cmp_eq_u32 s{sJ0}, s{sJT}")
        a(f"s_cbranch_scc1 L2_nofl{u}")
        flush(True)
        a(f"s_mov_b32 s{sJT}, s{sJ0}")
        a.label(f"L2_nofl{u}")
        a("s_waitcnt vmcnt(5) lgkmcnt(0)")
        k = 0
        for s in range(5):
            a(mf_s1(0, s, nx))
            for _ in range(3):
                a(f"v_exp_f32 v{E+k}, v{D+16+k}")
                k += 1
        a(f"v_exp_f32 v{E+15}, v{D+31}")
        a(f"s_mov_b32 s{sJ0}, s{sJ1}")
        a(f"s_mov_b32 s{sG}, s{sT0}")
        for i in range(8):
            a(f"v_pk_add_f32 {vr(E+2*i,2)}, {vr(E+2*i,2)}, 1.0 op_sel_hi:[1,0]")
        a(mf_s2(0, 0))
        for i in range(3):
            a(f"v_rcp_f32 v{E+i}, v{E+i}")
        a(mf_s2(0, 1))
        for i in range(3, 16):
            a(f"v_rcp_f32 v{E+i}, v{E+i}")
        a("s_nop 0")
        for i in range(8):
            a(f"v_pk_mul_f32 {vr(E+2*i,2)}, {vr(E+2*i,2)}, {vr(D+16+2*i,2)}")
        for i in range(8):
            a(f"v_cvt_pk_bf16_f32 v{P+8+i}, v{E+2*i}, v{E+2*i+1}")
        a(f"s_cmp_ge_u32 s{sG}, s{sG1}")

    a.stamp()
    a(".p2align 6")
    a.label("L2_loop")
    body(0)
    a("s_cbranch_scc1 L2_tail")
    body(1)
    a("s_cbranch_scc0 L2_loop")
    a.label("L2_tail")
    a.stamp()
    a("s_nop 1")
    a(mf_s2(1, 0))
    a(mf_s2(1, 1))
    a("s_nop 7")
    a("s_nop 7")
    flush(False)
    a.label("L2_wave_done")
    a.stamp()
    EW = X
    EH = X + 32
    EM = X + 48
    ED = X + 64
    ER = X + 80
    ET = X + 88
    a(f"s_add_u32 s{sLO}, s{sLO}, s{sSPAN}")
    a("s_waitcnt vmcnt(0)")
    a(f"s_cmp_lt_u32 s{sLO}, 250")
    a("s_cbranch_scc1 L2_noepild")
    a(f"s_cmp_ge_u32 s{sWAVE}, 4")
    a("s_cbranch_scc1 L2_noepild")
    a(f"s_mul_i32 s{sT0+2}, s{sB}, 40")
    a(f"s_and_b32 s{sT0+3}, s{sWAVE}, 1")
    a(f"s_lshl_b32 s{sT0+4}, s{sT0+3}, 12")
    a(f"s_add_u32 s{sT0+4}, s{sT0+4}, {WHA}")
    a(f"s_add_u32 s{sT0+5}, s{sT0+4}, 8192")
    a(f"s_lshr_b32 s{sT0+6}, s{sWAVE}, 1")
    a(f"s_lshl_b32 s{sT0+6}, s{sT0+6}, 5")
    a(f"v_add_u32 v9, s{sT0+6}, v4")
    a(f"v_add_u32 v6, s{sT0+2}, v9")
    a(f"v_lshlrev_b32 v7, 4, v5")
    for s_ in range(4):
        a(f"buffer_load_dwordx4 {vr(EW+4*s_,4)}, v3, {sr(sWT,4)}, s{sT0+4} offen offset:{1024*s_}")
    for s_ in range(4):
        a(f"buffer_load_dwordx4 {vr(EH+4*s_,4)}, v[6:7], {sr(sH,4)}, 0 idxen offen offset:{32*s_}")
    for s_ in range(4):
        a(f"buffer_load_dwordx4 {vr(EW+16+4*s_,4)}, v3, {sr(sWT,4)}, s{sT0+5} offen offset:{1024*s_}")
    a(f"s_lshl_b32 s{sT0+7}, s{sT0+3}, 6")
    a(f"v_mov_b32 v10, v6")
    a(f"v_lshlrev_b32 v11, 3, v5")
    a(f"v_add_u32 v11, s{sT0+7}, v11")
    for q in range(4):
        a(f"buffer_load_dwordx2 {vr(ER+2*q,2)}, v[10:11], {sr(sH,4)}, 0 idxen offen offset:{16*q}")
    a(f"v_min_u32 v12, 39, v9")
    a(f"v_mul_u32_u24 v12, {MB_ROW}, v12")
    a(f"v_lshl_add_u32 v12, v5, 4, v12")
    a(f"v_lshl_add_u32 v13, v6, 7, v11")
    a("s_waitcnt vmcnt(8)")
    for s_ in range(4):
        cop = "0" if s_ == 0 else vr(ED, 16)
        a(f"v_mfma_f32_32x32x16_bf16 {vr(ED,16)}, {vr(EW+4*s_,4)}, {vr(EH+4*s_,4)}, {cop}")
    a.label("L2_noepild")
    a(f"v_lshlrev_b32 v14, 2, v0")
    a(f"v_add_u32 v14, {SLOT}, v14")
    a(f"v_lshlrev_b32 v15, 2, v{LANE}")
    a(f"v_add_u32 v15, {TAG}, v15")
    a("s_waitcnt lgkmcnt(0)")
    a("s_barrier")
    a.stamp()
    a(f"ds_read_b32 v15, v15")
    for k in range(12):
        a(f"ds_read_b32 v{ET+k}, v14 offset:{k*SLOT_SZ}")
    a("s_waitcnt lgkmcnt(12)")
    for k in range(12):
        a(f"v_readlane_b32 s{sMASK+k}, v15, {k}")
    for k in range(12):
        a(f"ds_read_b32 v{ET+12+k}, v14 offset:{k*SLOT_SZ + 2048}")
    a("s_waitcnt lgkmcnt(0)")
    for k in range(12):
        if k == 0:
            a(f"s_set_gpr_idx_on s{sMASK}, gpr_idx(SRC0,DST)")
        else:
            a(f"s_set_gpr_idx_idx s{sMASK+k}")
        a(f"v_add_f32 v{RM}, v{RM}, v{ET+k}")
        a(f"v_add_f32 v{RP}, v{RP}, v{ET+12+k}")
    a("s_set_gpr_idx_off")
    a(f"s_cmp_ge_u32 s{sLO}, 250")
    a("s_cbranch_scc1 L2_epi")
    a("s_barrier")
    a(f"s_cmp_eq_u32 s{sT0+11}, 0")
    a("s_cbranch_scc1 L2_r2")
    a("s_branch L2_r2fix")
    a.label("L2_r2")
    pos_dma()
    a("s_branch L2_round")
    a.label("L2_r2fix")
    srd(a, sM, 84, 85, 128)
    a(f"v_lshlrev_b32 v6, 1, v4")
    a(f"buffer_load_ushort v{WX}, v6, {sr(sM,4)}, 0 offen")
    a(f"buffer_load_ushort v{WX+1}, v6, {sr(sM,4)}, 0 offen offset:64")
    a("s_waitcnt vmcnt(0)")
    a(f"v_lshlrev_b32 v{WX}, 16, v{WX}")
    a(f"v_lshlrev_b32 v{WX+1}, 16, v{WX+1}")
    a(f"s_mov_b32 s{sT0+11}, 0")
    a("s_branch L2_r2")
    a.label("L2_overflow")
    a(f"s_lshr_b32 s{sSPAN}, s{sSPAN}, 1")
    a("s_waitcnt vmcnt(0) lgkmcnt(0)")
    a("s_barrier")
    a("s_branch L2_round")

    a.label("L2_epi")
    a(f"s_mul_i32 s{sT0+8}, s{sWAVE}, {MB_ROW}")
    a(f"v_lshlrev_b32 v14, 1, v{LANE}")
    a(f"v_add_u32 v14, s{sT0+8}, v14")
    a(f"v_lshlrev_b32 v15, 2, v0")
    for j in range(5):
        a(f"v_mul_f32 v{RM+j}, {f32bits(-LN2):#x}, v{RM+j}")
        a(f"v_cvt_pk_bf16_f32 v{RM+j}, v{RM+j}, v{RM+j}")
        a(f"ds_write_b16 v14, v{RM+j} offset:{MB + j*8*MB_ROW}")
    a(f"s_cmp_ge_u32 s{sWAVE}, 6")
    a("s_cbranch_scc1 L2_epi_nop")
    for j in range(5):
        a(f"ds_write_b32 v15, v{RP+j} offset:{ACCP + j*1536}")
    a.label("L2_epi_nop")
    a(f"s_cmp_ge_u32 s{sWAVE}, 4")
    a("s_cbranch_scc1 L2_epi_pos_pre")
    srd(a, sM, 86, 87, 1280000)
    a("s_waitcnt lgkmcnt(0)")
    a("s_barrier")
    a.stamp()
    for s in range(4):
        a(f"ds_read_b128 {vr(EM+4*s,4)}, v12 offset:{MB + 32*s}")
    a("s_waitcnt vmcnt(0) lgkmcnt(0)")
    for s in range(4):
        a(f"v_mfma_f32_32x32x16_bf16 {vr(ED,16)}, {vr(EW+16+4*s,4)}, {vr(EM+4*s,4)}, {vr(ED,16)}")
    a("s_waitcnt vmcnt(0)")
    for q in range(8):
        a(f"v_lshlrev_b32 v{ET+16+2*q}, 16, v{ER+q}")
        a(f"v_and_b32 v{ET+17+2*q}, 0xffff0000, v{ER+q}")
    for i in range(16):
        a(f"v_mul_f32 v{ET+i}, {f32bits(-LOG2E):#x}, v{ED+i}")
    for i in range(16):
        a(f"v_exp_f32 v{ET+i}, v{ET+i}")
    for i in range(16):
        a(f"v_add_f32 v{ET+i}, 1.0, v{ET+i}")
    for i in range(16):
        a(f"v_rcp_f32 v{ET+i}, v{ET+i}")
    for i in range(16):
        a(f"v_fmac_f32 v{ET+16+i}, v{ET+i}, v{ED+i}")
    for i in range(8):
        a(f"v_cvt_pk_bf16_f32 v{ER+i}, v{ET+16+2*i}, v{ET+17+2*i}")
    a("v_cmpx_gt_u32 vcc, 40, v9")
    for q in range(4):
        a(f"buffer_store_dwordx2 {vr(ER+2*q,2)}, v13, {sr(sM,4)}, 0 offen offset:{16*q}")
    a.stamp()
    a.stamp_out(88, None)
    a("s_endpgm")

    a.label("L2_epi_pos_pre")
    a(f"v_subrev_u32 v6, 256, v0")
    a(f"v_mul_u32_u24 v7, 171, v6")
    a(f"v_lshrrev_b32 v7, 9, v7")
    a(f"v_mul_u32_u24 v8, 3, v7")
    a(f"v_sub_u32 v8, v6, v8")
    a(f"v_bfe_u32 v9, v7, 1, 2")
    a(f"v_mad_u32_u24 v9, v9, 3, v8")
    a(f"v_lshrrev_b32 v10, 3, v7")
    a(f"v_mul_u32_u24 v10, 1536, v10")
    a(f"v_lshrrev_b32 v11, 1, v9")
    a(f"v_lshl_add_u32 v10, v11, 8, v10")
    a(f"v_and_b32 v11, 1, v7")
    a(f"v_lshl_add_u32 v10, v11, 7, v10")
    a(f"v_and_b32 v11, 1, v9")
    a(f"v_lshl_add_u32 v10, v11, 6, v10")
    a(f"v_add_u32 v10, {ACCP}, v10")
    a(f"v_lshlrev_b32 v11, 4, v7")
    a(f"v_lshl_add_u32 v11, v8, 2, v11")
    a(f"v_add_u32 v11, {PD}, v11")
    srd(a, sM, 86, 87, 60000, add=1280000)
    a(f"s_mul_i32 s{sT0+3}, s{sB}, 240")
    a(f"v_lshlrev_b32 v12, 1, v6")
    a("s_waitcnt vmcnt(0) lgkmcnt(0)")
    a("s_barrier")
    a.stamp_out(88, None)
    a(f"s_cmp_ge_u32 s{sWAVE}, 6")
    a("s_cbranch_scc1 L2_done")
    a(f"v_cmpx_gt_u32 vcc, 120, v6")
    for i in range(4):
        a(f"ds_read_b128 {vr(ET+4*i,4)}, v10 offset:{16*i}")
    a(f"ds_read_b32 v13, v11")
    a("s_waitcnt lgkmcnt(0)")
    for st in (8, 4, 2, 1):
        for i in range(st):
            a(f"v_add_f32 v{ET+i}, v{ET+i}, v{ET+i+st}")
    a(f"v_fmac_f32 v13, {f32bits(-LN2):#x}, v{ET}")
    a(f"v_cvt_pk_bf16_f32 v13, v13, v13")
    a(f"buffer_store_short v13, v12, {sr(sM,4)}, s{sT0+3} offen")
    a.label("L2_done")
    a("s_endpgm")
    return dict(vgpr=(248 if STAMP else NV), sgpr=(102 if STAMP else NS), lds=LDS2)


HEADER = open("cdna_kernels/" + NAME + ".s.ref").read().split("\n")


def main(out):
    a1, a2 = Asm(), Asm()
    k1 = gen_k1(a1)
    k2 = gen_k2(a2)
    lines = []
    for ln in HEADER:
        if ln.startswith("; Override launch") or ln.startswith("; grid=ceil"):
            continue
        if ln.startswith("; @launch"):
            break
        lines.append(ln)
    lines.append(f"; @launch kernel=egnn_bin_kernel grid=(254,1,1) block=(640,1,1) lds={k1['lds']}")
    lines.append(f"; @launch kernel=egnn_main_kernel grid=(256,1,1) block=(512,1,1) lds={k2['lds']}")
    lines.append('.amdgcn_target "amdgcn-amd-amdhsa--gfx950"')
    lines.append(".text")
    for nm, asm in (("egnn_bin_kernel", a1), ("egnn_main_kernel", a2)):
        lines += [f".globl {nm}", ".p2align 8", f".type {nm},@function"]
        lines += [x for x in asm.l if x.strip()]
    lines.append('.section .rodata,"a"')
    for nm, k in (("egnn_bin_kernel", k1), ("egnn_main_kernel", k2)):
        nv = k["vgpr"]
        lines += [".p2align 6", f".amdhsa_kernel {nm}",
                  f"  .amdhsa_next_free_vgpr {nv}",
                  f"  .amdhsa_next_free_sgpr {k['sgpr']}",
                  f"  .amdhsa_accum_offset {(nv + 3) // 4 * 4}",
                  "  .amdhsa_group_segment_fixed_size 0",
                  "  .amdhsa_kernarg_size 88",
                  "  .amdhsa_user_sgpr_count 2",
                  "  .amdhsa_user_sgpr_kernarg_segment_ptr 1",
                  "  .amdhsa_system_sgpr_workgroup_id_x 1",
                  ".end_amdhsa_kernel"]
    open(out, "w").write("\n".join(lines) + "\n")


if __name__ == "__main__":
    main(sys.argv[1] if len(sys.argv) > 1 else "cdna_kernels/" + NAME + ".s")
```
